```python
import torch

def _softmax(x, axis=-1):
    return torch.softmax(x, dim=axis)
def _gelu(x):
    return torch.nn.functional.gelu(x, approximate="tanh")
def _silu(x):
    return torch.nn.functional.silu(x)
def _sigmoid(x):
    return torch.sigmoid(x)
def _layernorm(x, axis=-1, eps=1e-5):
    m = x.mean(dim=axis, keepdim=True)
    v = x.var(dim=axis, keepdim=True, unbiased=False)
    return (x - m) / torch.sqrt(v + eps)
def _scatter_add(tgt, idx, src, axis=0):
    return tgt.clone().index_add_(axis, idx, src)
def _segment_sum(src, seg, n):
    out = torch.zeros((n,) + src.shape[1:], dtype=src.dtype)
    return out.index_add_(0, seg, src)
def _pad(x, pw):
    flat = tuple(v for pair in reversed(pw) for v in pair)
    return torch.nn.functional.pad(x, flat)

kernel_name = 'recurrent_scan__ssm_conv_s5__mixer_token_mlp__prompt'

def setup_inputs():

    _w = (lambda a: (lambda t: t.to(torch.bfloat16) if t.is_floating_point() else t)(torch.as_tensor(a)))
    def _A_setup():
        B, S, D = 1, 2048, 512
        P = D
        Lambda_re = -0.5 * (lambda _x: torch.exp(torch.as_tensor(_x)))((lambda *s: torch.randn(*s, dtype=torch.bfloat16) * 0.4)(P))
        Lambda_im = (lambda *s: torch.randn(*s, dtype=torch.bfloat16) * 0.4)(P) * 1.0
        B_re = (lambda *s: torch.randn(*s, dtype=torch.bfloat16) * 0.4)(P, D) * (D ** -0.5)
        B_im = (lambda *s: torch.randn(*s, dtype=torch.bfloat16) * 0.4)(P, D) * (D ** -0.5)
        C_re = (lambda *s: torch.randn(*s, dtype=torch.bfloat16) * 0.4)(D, P) * (P ** -0.5)
        C_im = (lambda *s: torch.randn(*s, dtype=torch.bfloat16) * 0.4)(D, P) * (P ** -0.5)
        log_dt = (lambda *s: torch.randn(*s, dtype=torch.bfloat16) * 0.4)(P) * 0.3 - 2.0
        Dskip = (lambda *s: torch.randn(*s, dtype=torch.bfloat16) * 0.2)(D)
        return {
            "x": _w((lambda *s: torch.randn(*s, dtype=torch.bfloat16) * 0.05)(B, S, D)),
            "Lambda_re": _w(Lambda_re),
            "Lambda_im": _w(Lambda_im),
            "B_re": _w(B_re),
            "B_im": _w(B_im),
            "C_re": _w(C_re),
            "C_im": _w(C_im),
            "log_dt": _w(log_dt),
            "Dskip": _w(Dskip),
        }
    _A_in = _A_setup()

    def _B_setup():
        B, S, D, F = 1, 2048, 512, 1792
        return {
            "x": _w((lambda *s: torch.randn(*s, dtype=torch.bfloat16) * 0.05)(B, S, D)),
            "w1": _w((lambda *s: torch.randn(*s, dtype=torch.bfloat16) * 0.4)(S, F) * (S ** -0.5)),
            "b1": _w((lambda *s: torch.randn(*s, dtype=torch.bfloat16) * 3.2)(F) * 0.02),
            "w2": _w((lambda *s: torch.randn(*s, dtype=torch.bfloat16) * 0.4)(F, S) * (F ** -0.5)),
            "b2": _w((lambda *s: torch.randn(*s, dtype=torch.bfloat16) * 0.8)(S) * 0.02),
        }
    _B_in = _B_setup()

    return {
        "A_x": _A_in["x"],
        "A_Lambda_re": _A_in["Lambda_re"],
        "A_Lambda_im": _A_in["Lambda_im"],
        "A_B_re": _A_in["B_re"],
        "A_B_im": _A_in["B_im"],
        "A_C_re": _A_in["C_re"],
        "A_C_im": _A_in["C_im"],
        "A_log_dt": _A_in["log_dt"],
        "A_Dskip": _A_in["Dskip"],
        "B_x": _B_in["x"],
        "B_w1": _B_in["w1"],
        "B_b1": _B_in["b1"],
        "B_w2": _B_in["w2"],
        "B_b2": _B_in["b2"],
    }

def reference(A_x, A_Lambda_re, A_Lambda_im, A_B_re, A_B_im, A_C_re, A_C_im, A_log_dt, A_Dskip, B_x, B_w1, B_b1, B_w2, B_b2):
    def _A_ref(x, Lambda_re, Lambda_im, B_re, B_im, C_re, C_im, log_dt, Dskip):
        Bsz, L, H = x.shape
        Lam = Lambda_re + 1j * Lambda_im
        Bmat = B_re + 1j * B_im
        Cmat = C_re + 1j * C_im
        dt = torch.exp(log_dt)
        Lam_bar = torch.exp(dt * Lam)
        B_bar = ((Lam_bar - 1.0) / Lam)[:, None] * Bmat
        Bu = torch.einsum("bld,pd->blp", x + 0j, B_bar)
        h = torch.zeros_like(Bu[:, 0, :])
        hs = []
        for t in range(L):
            h = Lam_bar[None, :] * h + Bu[:, t, :]
            hs.append(h)
        hseq = torch.stack(hs, 1)
        y = 2.0 * torch.einsum("blp,dp->bld", hseq, Cmat).real + x * Dskip[None, None, :]
        return y

    def _B_ref(x, w1, b1, w2, b2):
        B, S, D = x.shape
        h = _layernorm(x, axis=-1)
        u = torch.einsum("bsd,sf->bdf", h, w1) + b1
        u = _gelu(u)
        y = torch.einsum("bdf,fs->bds", u, w2) + b2
        return (lambda x, *d: x.permute(*d))(y, 0, 2, 1)

    x = A_x
    xn = _layernorm(x, axis=-1)
    s = _A_ref(xn, A_Lambda_re, A_Lambda_im, A_B_re, A_B_im, A_C_re, A_C_im, A_log_dt, A_Dskip)
    g = _silu(_B_ref(xn, B_w1, B_b1, B_w2, B_b2))
    return x + s * g
```

```python
from gen import *


def reduce8(a, v):
    a.nop(2)
    a(f"v_add_f32_dpp v{v}, v{v}, v{v} quad_perm:[1,0,3,2] row_mask:0xf bank_mask:0xf")
    a.nop(2)
    a(f"v_add_f32_dpp v{v}, v{v}, v{v} quad_perm:[2,3,0,1] row_mask:0xf bank_mask:0xf")
    a.nop(2)
    a(f"v_add_f32_dpp v{v}, v{v}, v{v} row_half_mirror row_mask:0xf bank_mask:0xf")


def emit_coef(a, vch_off, S_LRE, S_LIM, S_LDT, ar, ai, t, cr=None, ci=None):
    lr, li, ld = t + 4, t + 5, t + 6
    a(f"buffer_load_ushort v{lr}, v{vch_off}, s[{S_LRE}:{S_LRE+3}], 0 offen")
    a(f"buffer_load_ushort v{li}, v{vch_off}, s[{S_LIM}:{S_LIM+3}], 0 offen")
    a(f"buffer_load_ushort v{ld}, v{vch_off}, s[{S_LDT}:{S_LDT+3}], 0 offen")
    a("s_waitcnt vmcnt(0)")
    for r in (lr, li, ld):
        a(f"v_lshlrev_b32 v{r}, 16, v{r}")
    emit_lambar(a, lr, li, ld, ar, ai, t)
    if cr is not None:
        nr, inv = t, t + 1
        a(f"v_add_f32 v{nr}, -1.0, v{ar}")
        a(f"v_mul_f32 v{inv}, v{lr}, v{lr}")
        a(f"v_fma_f32 v{inv}, v{li}, v{li}, v{inv}")
        a(f"v_rcp_f32 v{inv}, v{inv}")
        a(f"v_mul_f32 v{cr}, v{nr}, v{lr}")
        a(f"v_fma_f32 v{cr}, v{ai}, v{li}, v{cr}")
        a(f"v_mul_f32 v{ci}, v{ai}, v{lr}")
        a(f"v_fma_f32 v{ci}, -v{nr}, v{li}, v{ci}")
        a(f"v_mul_f32 v{cr}, v{cr}, v{inv}")
        a(f"v_mul_f32 v{ci}, v{ci}, v{inv}")


def gen_k1(a):
    name = "k1_kernel"
    kernel_header(a, name)
    a.vmq = []
    a("s_cmp_ge_u32 s2, 256")
    a("s_cbranch_scc1 k1_end")
    a("s_load_dwordx2 s[24:25], s[0:1], 0")
    a("s_load_dwordx4 s[68:71], s[0:1], 8")
    a("s_load_dwordx4 s[72:75], s[0:1], 24")
    a("s_load_dwordx2 s[76:77], s[0:1], 56")
    a("s_load_dwordx2 s[28:29], s[0:1], 128")
    a("s_and_b32 s30, s2, 7")
    a("s_lshr_b32 s31, s2, 3")
    a("s_lshr_b32 s32, s31, 3")
    a("s_lshl_b32 s33, s30, 2")
    a("s_add_u32 s33, s33, s32")
    a("s_and_b32 s34, s31, 7")
    emit_lane_ids(a)
    a("s_waitcnt lgkmcnt(0)")
    S_X, S_BR, S_BI, S_XN, S_H2, S_HL, S_E, S_LRE, S_LIM, S_LDT = 4, 8, 12, 16, 20, 48, 52, 56, 60, 64
    a.srd(S_X, 24, 0, 2048 * 512 * 2)
    a.srd(S_BR, 72, 0, 512 * 512 * 2)
    a.srd(S_BI, 74, 0, 512 * 512 * 2)
    a.srd(S_XN, 28, WS_XN, SZ_XN)
    a.srd(S_H2, 28, WS_H2, SZ_H2)
    a.srd(S_HL, 28, WS_HLOC, SZ_HLOC)
    a.srd(S_E, 28, WS_E, SZ_E)
    a.srd(S_LRE, 68, 0, 1024)
    a.srd(S_LIM, 70, 0, 1024)
    a.srd(S_LDT, 76, 0, 1024)
    for i in range(8):
        a(f"s_add_u32 s{80+i}, s34, {i}")
        a(f"s_and_b32 s{80+i}, s{80+i}, 7")
        a(f"s_lshl_b32 s{88+i}, s{80+i}, 13")
        a(f"s_lshl_b32 s{80+i}, s{80+i}, 7")
    VX0, VX1 = 10, 11
    VL0, VL1 = 12, 13
    VB0, VB1 = 14, 15
    RPA_LO, RPA_HI = 16, 20
    RPB_LO, RPB_HI = 24, 28
    XB = 64
    DB = 128
    a("v_lshrrev_b32 v2, 3, v1")
    a("v_and_b32 v3, 7, v1")
    for p, (vx, vl) in enumerate(((VX0, VL0), (VX1, VL1))):
        a(f"s_lshl_b32 s43, s40, 4")
        a(f"s_add_u32 s43, s43, {8*p}")
        a(f"v_add_u32 v4, s43, v2")
        a(f"s_lshl_b32 s43, s33, 6")
        a(f"v_add_u32 v5, s43, v4")
        a(f"v_lshlrev_b32 v5, 10, v5")
        a(f"v_lshlrev_b32 v6, 4, v3")
        a(f"v_add_u32 v{vx}, v5, v6")
        a(f"v_lshrrev_b32 v5, 1, v4")
        a(f"v_and_b32 v5, 7, v5")
        a(f"v_xor_b32 v5, v5, v3")
        a(f"v_lshlrev_b32 v5, 4, v5")
        a(f"v_lshlrev_b32 v6, 7, v4")
        a(f"v_add_u32 v{vl}, v5, v6")
    for p, vx in enumerate((VX0, VX1)):
        for i in range(8):
            r = XB + 32 * p + 4 * i
            a(f"buffer_load_dwordx4 v[{r}:{r+3}], v{vx}, s[{S_X}:{S_X+3}], s{80+i} offen")
            a.vm_issue(("x", p))
    a("s_lshl_b32 s45, s34, 16")
    emit_dma_voffsets(a, VB0, VB1, 1024, 45, 'plain')
    a("s_lshl_b32 s44, s40, 11")
    D, T = 4, 8
    SB = 79

    def dma(t):
        slot = t % D
        a(f"s_mov_b32 s{SB}, {128*t}")
        emit_dma_tile(a, ("t", t), VB0, VB1, S_BR, SB, 65536 + slot * 16384)
        emit_dma_tile(a, ("t", t), VB0, VB1, S_BI, SB, 65536 + slot * 16384 + 8192)

    for t in range(D):
        dma(t)
    emit_plain_read_addr(a, RPA_LO, RPA_HI, 41)
    emit_plain_read_addr(a, RPB_LO, RPB_HI, 42)
    a("s_mov_b32 s46, 0x3f803f80")
    a(f"s_mov_b32 s47, {f2u(1.0/512)}")
    a(f"s_mov_b32 s96, {f2u(1e-5)}")
    S0, S1, S2, S3 = 2, 3, 4, 5
    MP = 6
    SS = 8
    for p in range(2):
        vx, vl = (VX0, VL0) if p == 0 else (VX1, VL1)
        X = [XB + 32 * p + 4 * i for i in range(8)]
        a.vm_wait(("x", p))
        for k in range(4):
            a(f"v_mov_b32 v{S0+k}, 0")
        for i in range(8):
            for k in range(4):
                a(f"v_dot2_f32_bf16 v{S0+k}, v{X[i]+k}, s46, v{S0+k}")
        a.nop(3)
        a(f"v_add_f32 v{S0}, v{S0}, v{S1}")
        a(f"v_add_f32 v{S2}, v{S2}, v{S3}")
        a(f"v_add_f32 v{S0}, v{S0}, v{S2}")
        reduce8(a, S0)
        a(f"v_mul_f32 v{S0}, s47, v{S0}")
        emit_round_bf16(a, S1, S0)
        a(f"v_sub_f32 v{S2}, v{S0}, v{S1}")
        a(f"v_sub_f32 v{MP}, 0, v{S1}")
        a(f"v_sub_f32 v{MP+1}, 0, v{S1}")
        for k in range(4):
            a(f"v_mov_b32 v{32+2*k}, 0")
            a(f"v_mov_b32 v{33+2*k}, 0")
        n = 0
        for i in range(8):
            for k in range(4):
                d = DB + 2 * n
                a(f"v_lshlrev_b32 v{d}, 16, v{X[i]+k}")
                a(f"v_and_b32 v{d+1}, 0xffff0000, v{X[i]+k}")
                a(f"v_pk_add_f32 v[{d}:{d+1}], v[{d}:{d+1}], v[{MP}:{MP+1}]")
                acc = 32 + 2 * (n & 3)
                a(f"v_pk_fma_f32 v[{acc}:{acc+1}], v[{d}:{d+1}], v[{d}:{d+1}], v[{acc}:{acc+1}]")
                n += 1
        a("v_pk_add_f32 v[32:33], v[32:33], v[34:35]")
        a("v_pk_add_f32 v[36:37], v[36:37], v[38:39]")
        a("v_pk_add_f32 v[32:33], v[32:33], v[36:37]")
        a(f"v_add_f32 v{S3}, v32, v33")
        reduce8(a, S3)
        a(f"v_mul_f32 v{S3}, s47, v{S3}")
        a(f"v_fma_f32 v{S3}, -v{S2}, v{S2}, v{S3}")
        emit_round_bf16(a, S3, S3)
        a(f"v_add_f32 v{S3}, s96, v{S3}")
        emit_round_bf16(a, S3, S3)
        a(f"v_sqrt_f32 v{S3}, v{S3}")
        a("s_nop 0")
        emit_round_bf16(a, S3, S3)
        a(f"v_rcp_f32 v{MP}, v{S3}")
        a("s_nop 0")
        a(f"v_mov_b32 v{MP+1}, v{MP}")
        n = 0
        for i in range(8):
            for k in range(4):
                d = DB + 2 * n
                x = X[i] + k
                a(f"v_cvt_pk_bf16_f32 v{x}, v{d}, v{d+1}")
                a(f"v_lshlrev_b32 v{d}, 16, v{x}")
                a(f"v_and_b32 v{d+1}, 0xffff0000, v{x}")
                a(f"v_pk_mul_f32 v[{d}:{d+1}], v[{d}:{d+1}], v[{MP}:{MP+1}]")
                a(f"v_cvt_pk_bf16_f32 v{x}, v{d}, v{d+1}")
                n += 1
        for i in range(8):
            a(f"v_add_u32 v2, s{88+i}, v{vl}")
            a(f"ds_write_b128 v2, v[{X[i]}:{X[i]+3}]")
        a(f"buffer_store_dwordx4 v[{X[0]}:{X[0]+3}], v{vx}, s[{S_XN}:{S_XN+3}], s80 offen")
        a.vm_issue("st")
        for k in range(4):
            a(f"v_mov_b32 v{S0+k}, 0")
            a(f"v_mov_b32 v{32+k}, 0")
        for i in range(8):
            for k in range(4):
                a(f"v_dot2_f32_bf16 v{S0+k}, v{X[i]+k}, s46, v{S0+k}")
                a(f"v_dot2_f32_bf16 v{32+k}, v{X[i]+k}, v{X[i]+k}, v{32+k}")
        a.nop(3)
        a(f"v_add_f32 v{S0}, v{S0}, v{S1}")
        a(f"v_add_f32 v{S2}, v{S2}, v{S3}")
        a(f"v_add_f32 v{S0}, v{S0}, v{S2}")
        a(f"v_add_f32 v32, v32, v33")
        a(f"v_add_f32 v34, v34, v35")
        a(f"v_add_f32 v32, v32, v34")
        reduce8(a, S0)
        reduce8(a, 32)
        a(f"v_mul_f32 v{S0}, s47, v{S0}")
        a(f"v_mul_f32 v32, s47, v32")
        a(f"v_fma_f32 v32, -v{S0}, v{S0}, v32")
        emit_round_bf16(a, S1, S0)
        emit_round_bf16(a, 32, 32)
        a(f"v_add_f32 v32, s96, v32")
        emit_round_bf16(a, 32, 32)
        a(f"v_sqrt_f32 v32, v32")
        a("s_nop 0")
        emit_round_bf16(a, 32, 32)
        a(f"v_rcp_f32 v34, v32")
        a(f"v_sub_f32 v{MP}, 0, v{S1}")
        a(f"v_sub_f32 v{MP+1}, 0, v{S1}")
        a(f"v_mov_b32 v35, v34")
        for k in range(4):
            x = X[0] + k
            d = DB + 2 * k
            a(f"v_lshlrev_b32 v{d}, 16, v{x}")
            a(f"v_and_b32 v{d+1}, 0xffff0000, v{x}")
            a(f"v_pk_add_f32 v[{d}:{d+1}], v[{d}:{d+1}], v[{MP}:{MP+1}]")
            a(f"v_cvt_pk_bf16_f32 v{36+k}, v{d}, v{d+1}")
            a(f"v_lshlrev_b32 v{d}, 16, v{36+k}")
            a(f"v_and_b32 v{d+1}, 0xffff0000, v{36+k}")
            a(f"v_pk_mul_f32 v[{d}:{d+1}], v[{d}:{d+1}], v[34:35]")
            a(f"v_cvt_pk_bf16_f32 v{36+k}, v{d}, v{d+1}")
        a(f"buffer_store_dwordx4 v[36:39], v{vx}, s[{S_H2}:{S_H2+3}], s80 offen")
        a.vm_issue("st")
        a.nop(2)
    ACR, ACI = 32, 48
    FR = 64
    for r in range(16):
        a(f"v_mov_b32 v{ACR+r}, 0")
        a(f"v_mov_b32 v{ACI+r}, 0")

    def reads(t):
        slot = t % D
        buf = t & 1
        for kk in range(4):
            f = FR + 48 * buf + 4 * kk
            a(f"ds_read_b128 v[{f}:{f+3}], v{RPA_LO+kk} offset:{t*8192}")
            a(f"ds_read_b128 v[{f+16}:{f+19}], v{RPB_HI+kk} offset:{slot*16384}")
            a(f"ds_read_b128 v[{f+32}:{f+35}], v{RPB_HI+kk} offset:{slot*16384+8192}")

    def mfmas(t):
        buf = t & 1
        for kk in range(4):
            f = FR + 48 * buf + 4 * kk
            a(f"v_mfma_f32_32x32x16_bf16 v[{ACR}:{ACR+15}], v[{f}:{f+3}], v[{f+16}:{f+19}], v[{ACR}:{ACR+15}]")
            a(f"v_mfma_f32_32x32x16_bf16 v[{ACI}:{ACI+15}], v[{f}:{f+3}], v[{f+32}:{f+35}], v[{ACI}:{ACI+15}]")

    a.vm_wait(("t", 0))
    a("s_waitcnt lgkmcnt(0)")
    a("s_barrier")
    reads(0)
    for t in range(T):
        if t + 1 < T:
            a.vm_wait(("t", t + 1))
        a("s_waitcnt lgkmcnt(0)")
        a("s_barrier")
        if t + D < T:
            dma(t + D)
        if t + 1 < T:
            reads(t + 1)
        mfmas(t)
    AR, AI, CR, CI = 2, 3, 4, 5
    a("v_and_b32 v10, 31, v1")
    a("s_lshl_b32 s43, s42, 5")
    a("v_add_u32 v10, s43, v10")
    a("s_lshl_b32 s43, s34, 6")
    a("v_add_u32 v11, s43, v10")
    a("v_lshlrev_b32 v11, 1, v11")
    emit_coef(a, 11, S_LRE, S_LIM, S_LDT, AR, AI, 12, CR, CI)
    a("v_lshrrev_b32 v11, 5, v1")
    a("v_lshlrev_b32 v11, 2, v11")
    a("s_lshl_b32 s43, s41, 5")
    a("v_add_u32 v11, s43, v11")
    a("v_lshlrev_b32 v11, 9, v11")
    a("v_lshlrev_b32 v10, 3, v10")
    a("v_add_u32 v11, v11, v10")
    a("s_barrier")
    for r in range(16):
        ro = 8 * (r >> 2) + (r & 3)
        a(f"v_mul_f32 v6, v{CI}, v{ACI+r}")
        a(f"v_mul_f32 v7, v{CI}, v{ACR+r}")
        a(f"v_fma_f32 v{ACR+r}, v{CR}, v{ACR+r}, -v6")
        a(f"v_fma_f32 v{ACI+r}, v{CR}, v{ACI+r}, v7")
    for r in range(16):
        ro = 8 * (r >> 2) + (r & 3)
        a(f"v_mov_b32 v6, v{ACR+r}")
        a(f"v_mov_b32 v7, v{ACI+r}")
        a(f"ds_write_b64 v11, v[6:7] offset:{ro*512}")
    a("s_lshl_b32 s43, s34, 6")
    a("v_add_u32 v10, s43, v1")
    a("v_lshlrev_b32 v10, 1, v10")
    emit_coef(a, 10, S_LRE, S_LIM, S_LDT, AR, AI, 12)
    a("s_waitcnt lgkmcnt(0)")
    a("s_barrier")
    BU = 64
    a("s_lshl_b32 s43, s40, 13")
    a("v_lshlrev_b32 v10, 3, v1")
    a("v_add_u32 v10, s43, v10")
    for t in range(16):
        a(f"ds_read_b64 v[{BU+2*t}:{BU+2*t+1}], v10 offset:{t*512}")
    HR, HI = 6, 7
    a(f"v_mov_b32 v{HR}, 0")
    a(f"v_mov_b32 v{HI}, 0")

    def scan_pass(store):
        for t in range(16):
            if not store:
                a(f"s_waitcnt lgkmcnt({15-t})")
            a(f"v_fma_f32 v8, -v{AI}, v{HI}, v{BU+2*t}")
            a(f"v_fma_f32 v9, v{AI}, v{HR}, v{BU+2*t+1}")
            a(f"v_fma_f32 v{HR}, v{AR}, v{HR}, v8")
            a(f"v_fma_f32 v{HI}, v{AR}, v{HI}, v9")
            if store:
                a(f"s_mov_b32 s43, {t*4096}")
                a(f"buffer_store_dword v{HR}, v12, s[{S_HL}:{S_HL+3}], s43 offen")
                a(f"buffer_store_dword v{HI}, v12, s[{S_HL}:{S_HL+3}], s43 offen offset:2048")

    scan_pass(False)
    a("s_lshl_b32 s43, s40, 9")
    a("v_lshlrev_b32 v11, 3, v1")
    a("v_add_u32 v13, s43, v11")
    a(f"ds_write_b64 v13, v[{HR}:{HI}] offset:32768")
    P0, P1 = 14, 15
    a(f"v_mov_b32 v{P0}, v{AR}")
    a(f"v_mov_b32 v{P1}, v{AI}")
    for _ in range(4):
        a(f"v_mul_f32 v8, v{P1}, v{P1}")
        a(f"v_mul_f32 v9, v{P0}, v{P1}")
        a(f"v_fma_f32 v{P0}, v{P0}, v{P0}, -v8")
        a(f"v_add_f32 v{P1}, v9, v9")
    a("s_waitcnt lgkmcnt(0)")
    a("s_barrier")
    for k in range(3):
        a(f"ds_read_b64 v[{16+2*k}:{17+2*k}], v11 offset:{32768 + k*512}")
    a(f"v_mov_b32 v{HR}, 0")
    a(f"v_mov_b32 v{HI}, 0")
    a("s_waitcnt lgkmcnt(0)")
    for k in range(3):
        a(f"s_cmp_le_u32 s40, {k}")
        a("s_cbranch_scc1 k1_carry_done")
        a(f"v_fma_f32 v8, -v{P1}, v{HI}, v{16+2*k}")
        a(f"v_fma_f32 v9, v{P1}, v{HR}, v{17+2*k}")
        a(f"v_fma_f32 v{HR}, v{P0}, v{HR}, v8")
        a(f"v_fma_f32 v{HI}, v{P0}, v{HI}, v9")
    a.label("k1_carry_done")
    a("s_lshl_b32 s43, s33, 6")
    a("s_lshl_b32 s45, s40, 4")
    a("s_add_u32 s43, s43, s45")
    a("s_lshl_b32 s43, s43, 12")
    a("s_lshl_b32 s45, s34, 8")
    a("s_add_u32 s43, s43, s45")
    a("v_lshlrev_b32 v12, 2, v1")
    a("v_add_u32 v12, s43, v12")
    scan_pass(True)
    a("s_cmp_eq_u32 s40, 3")
    a("s_cbranch_scc0 k1_end")
    a("s_lshl_b32 s43, s33, 12")
    a("s_lshl_b32 s45, s34, 8")
    a("s_add_u32 s43, s43, s45")
    a("v_lshlrev_b32 v12, 2, v1")
    a("v_add_u32 v12, s43, v12")
    a(f"buffer_store_dword v{HR}, v12, s[{S_E}:{S_E+3}], 0 offen")
    a(f"buffer_store_dword v{HI}, v12, s[{S_E}:{S_E+3}], 0 offen offset:2048")
    a.label("k1_end")
    a("s_endpgm")
    kernel_footer(a, name, 256)
```

```python
from gen import *


def gen_k3(a):
    name = "k3_kernel"
    kernel_header(a, name)
    a.vmq = []
    a("s_cmp_ge_u32 s2, 256")
    a("s_cbranch_scc1 k3_end")
    a("s_load_dwordx2 s[24:25], s[0:1], 0")
    a("s_load_dwordx4 s[68:71], s[0:1], 40")
    a("s_load_dwordx2 s[26:27], s[0:1], 64")
    a("s_load_dwordx4 s[72:75], s[0:1], 96")
    a("s_load_dwordx2 s[76:77], s[0:1], 112")
    a("s_load_dwordx2 s[28:29], s[0:1], 128")
    a("s_and_b32 s30, s2, 7")
    a("s_lshr_b32 s31, s2, 3")
    a("s_lshr_b32 s32, s31, 3")
    a("s_lshl_b32 s33, s30, 2")
    a("s_add_u32 s33, s33, s32")
    a("s_and_b32 s34, s31, 7")
    emit_lane_ids(a)
    a("s_waitcnt lgkmcnt(0)")
    S_W2, S_GU, S_HF, S_CR, S_CI, S_X, S_XN, S_OUT, S_B2, S_DS = 4, 8, 12, 16, 20, 48, 52, 56, 60, 64
    a.srd(S_W2, 72, 0, 1792 * 2048 * 2)
    a.srd(S_GU, 28, WS_GU, SZ_GU)
    a.srd(S_HF, 28, WS_HFIN, SZ_HFIN)
    a.srd(S_CR, 68, 0, 512 * 512 * 2)
    a.srd(S_CI, 70, 0, 512 * 512 * 2)
    a.srd(S_X, 24, 0, 2048 * 512 * 2)
    a.srd(S_XN, 28, WS_XN, SZ_XN)
    a.srd(S_OUT, 76, 0, 2048 * 512 * 4)
    a.srd(S_B2, 74, 0, 2048 * 2)
    a.srd(S_DS, 26, 0, 512 * 2)
    VW0, VW1, VG0, VG1, VH0, VH1, VC0, VC1 = 10, 11, 12, 13, 14, 15, 16, 17
    RTA_LO, RTA_HI = 18, 19
    RPB_LO, RPB_HI = 20, 24
    RPA_LO, RPA_HI = 28, 32
    ACCG, ACCS = 40, 56
    EPI = 72
    FR = 128
    a("s_lshl_b32 s45, s33, 7")
    a("s_mul_i32 s46, s34, 64*3584")
    a("s_lshl_b32 s47, s33, 17")
    a("s_lshl_b32 s78, s34, 16")
    emit_dma_voffsets(a, VW0, VW1, 4096, 45, 'tr')
    emit_dma_voffsets(a, VG0, VG1, 3584, 46, 'plain')
    emit_dma_voffsets(a, VH0, VH1, 2048, 47, 'plain')
    emit_dma_voffsets(a, VC0, VC1, 1024, 78, 'plain')
    emit_tr_read_addr(a, RTA_LO, RTA_HI, 41)
    emit_plain_read_addr(a, RPB_LO, RPB_HI, 42)
    emit_plain_read_addr(a, RPA_LO, RPA_HI, 41)
    a("s_lshl_b32 s44, s40, 11")
    for r in range(16):
        a(f"v_mov_b32 v{ACCG+r}, 0")
        a(f"v_mov_b32 v{ACCS+r}, 0")
    D = 8
    NB, NS = 28, 16
    T = NB + NS
    SA, SB = 79, 80

    def dma(t):
        slot = t % D
        if t < NB:
            a(f"s_mov_b32 s{SA}, {262144*t}")
            a(f"s_mov_b32 s{SB}, {128*t}")
            emit_dma_tile(a, ("t", t), VW0, VW1, S_W2, SA, slot * 16384)
            emit_dma_tile(a, ("t", t), VG0, VG1, S_GU, SB, slot * 16384 + 8192)
        else:
            u = t - NB
            a(f"s_mov_b32 s{SA}, {128*u}")
            a(f"s_mov_b32 s{SB}, {128*(u & 7)}")
            emit_dma_tile(a, ("t", t), VH0, VH1, S_HF, SA, slot * 16384)
            emit_dma_tile(a, ("t", t), VC0, VC1, S_CR if u < 8 else S_CI, SB, slot * 16384 + 8192)

    def reads(t):
        slot = t % D
        buf = t & 1
        hi = slot >= 4
        base = (slot - 4 if hi else slot) * 16384
        for kk in range(4):
            fa = FR + 32 * buf + 4 * kk
            fb = FR + 32 * buf + 16 + 4 * kk
            if t < NB:
                for h in range(2):
                    a(f"ds_read_b64_tr_b16 v[{fa+2*h}:{fa+2*h+1}], v{RTA_HI if hi else RTA_LO} offset:{base + kk*2048 + h*512}")
            else:
                a(f"ds_read_b128 v[{fa}:{fa+3}], v{(RPA_HI if hi else RPA_LO) + kk} offset:{base}")
            a(f"ds_read_b128 v[{fb}:{fb+3}], v{(RPB_HI if hi else RPB_LO) + kk} offset:{base + 8192}")

    def mfmas(t):
        buf = t & 1
        acc = ACCG if t < NB else ACCS
        for kk in range(4):
            fa = FR + 32 * buf + 4 * kk
            fb = FR + 32 * buf + 16 + 4 * kk
            a(f"v_mfma_f32_32x32x16_bf16 v[{acc}:{acc+15}], v[{fa}:{fa+3}], v[{fb}:{fb+3}], v[{acc}:{acc+15}]")

    def epi_loads():
        a("v_and_b32 v2, 31, v1")
        a("s_lshl_b32 s43, s42, 5")
        a("v_add_u32 v2, s43, v2")
        a("s_lshl_b32 s43, s34, 6")
        a("v_add_u32 v2, s43, v2")
        a("v_lshrrev_b32 v3, 5, v1")
        a("v_lshlrev_b32 v3, 2, v3")
        a("s_lshl_b32 s43, s41, 5")
        a("v_add_u32 v3, s43, v3")
        a("s_lshl_b32 s43, s33, 6")
        a("v_add_u32 v3, s43, v3")
        a("v_lshlrev_b32 v4, 10, v3")
        a("v_lshlrev_b32 v5, 1, v2")
        a("v_add_u32 v4, v4, v5")
        a("v_lshlrev_b32 v6, 1, v3")
        a("v_lshlrev_b32 v7, 1, v2")
        a("v_lshlrev_b32 v8, 11, v3")
        a("v_lshlrev_b32 v9, 2, v2")
        a("v_add_u32 v8, v8, v9")
        a(f"buffer_load_ushort v{EPI+48}, v7, s[{S_DS}:{S_DS+3}], 0 offen")
        a.vm_issue("epi")
        for r in range(16):
            ro = 8 * (r >> 2) + (r & 3)
            a(f"s_mov_b32 s43, {ro*1024}")
            a(f"buffer_load_ushort v{EPI+r}, v4, s[{S_X}:{S_X+3}], s43 offen")
            a.vm_issue("epi")
            a(f"buffer_load_ushort v{EPI+16+r}, v4, s[{S_XN}:{S_XN+3}], s43 offen")
            a.vm_issue("epi")
            a(f"buffer_load_ushort v{EPI+32+r}, v6, s[{S_B2}:{S_B2+3}], 0 offen offset:{ro*2}")
            a.vm_issue("epi")

    epi_loads()
    for t in range(D):
        dma(t)
    a.vm_wait(("t", 0))
    a("s_barrier")
    reads(0)
    for t in range(T):
        if t + 1 < T:
            a.vm_wait(("t", t + 1))
        a("s_waitcnt lgkmcnt(0)")
        a("s_barrier")
        if t + D < T:
            dma(t + D)
        if t + 1 < T:
            reads(t + 1)
        mfmas(t)
    a.vm_wait_all()
    a(f"v_lshlrev_b32 v{EPI+48}, 16, v{EPI+48}")
    a(f"s_mov_b32 s55, {f2u(-LOG2E)}")
    a.nop(12)
    for r in range(16):
        y, t1, t2 = 2, 3, 5
        ro = 8 * (r >> 2) + (r & 3)
        emit_round_bf16(a, y, ACCG + r)
        a(f"v_lshlrev_b32 v{t1}, 16, v{EPI+32+r}")
        a(f"v_add_f32 v{y}, v{y}, v{t1}")
        emit_round_bf16(a, y, y)
        a(f"v_mul_f32 v{t1}, s55, v{y}")
        a(f"v_exp_f32 v{t1}, v{t1}")
        a(f"v_lshlrev_b32 v{t2}, 16, v{EPI+16+r}")
        a(f"v_add_f32 v{t1}, 1.0, v{t1}")
        a(f"v_rcp_f32 v{t1}, v{t1}")
        a(f"v_mul_f32 v{t2}, v{t2}, v{EPI+48}")
        a(f"v_mul_f32 v{t1}, v{t1}, v{y}")
        emit_round_bf16(a, t1, t1)
        emit_round_bf16(a, t2, t2)
        a(f"v_fma_f32 v{t2}, 2.0, v{ACCS+r}, v{t2}")
        a(f"v_lshlrev_b32 v{y}, 16, v{EPI+r}")
        a(f"v_fma_f32 v{y}, v{t2}, v{t1}, v{y}")
        a(f"s_mov_b32 s43, {ro*2048}")
        a(f"buffer_store_dword v{y}, v8, s[{S_OUT}:{S_OUT+3}], s43 offen")
        if r < 15:
            a("s_nop 0")
    a.label("k3_end")
    a("s_endpgm")
    kernel_footer(a, name, 256)
```

```python
import sys

OUT = "recurrent_scan__ssm_conv_s5__mixer_token_mlp__prompt.s"

WS_XN, WS_H2, WS_HLOC, WS_E, WS_HFIN, WS_GU = 0, 2 << 20, 4 << 20, 12 << 20, 13 << 20, 17 << 20
SZ_XN, SZ_H2, SZ_HLOC, SZ_E, SZ_HFIN, SZ_GU = 2 << 20, 2 << 20, 8 << 20, 32 * 1024 * 4, 4 << 20, 512 * 1792 * 2

LOG2E = 1.4426950408889634


def f2u(x):
    import struct
    return struct.unpack("<I", struct.pack("<f", x))[0]


class Asm:
    def __init__(self):
        self.lines = []
        self.vmq = []

    def __call__(self, s):
        self.lines.append("    " + s)

    def label(self, l):
        self.lines.append(l + ":")

    def raw(self, s):
        self.lines.append(s)

    def nop(self, n):
        while n > 0:
            k = min(n, 16)
            self(f"s_nop {k-1}")
            n -= k

    def vm_issue(self, tag):
        self.vmq.append(tag)

    def vm_wait(self, tag):
        if tag not in self.vmq:
            return
        idx = max(i for i, t in enumerate(self.vmq) if t == tag)
        n = len(self.vmq) - 1 - idx
        assert n <= 63
        self(f"s_waitcnt vmcnt({n})")
        self.vmq = self.vmq[idx + 1:]

    def vm_wait_all(self):
        self("s_waitcnt vmcnt(0)")
        self.vmq = []

    def srd(self, sreg, ptr_lo, off, size):
        if off:
            self(f"s_add_u32 s{sreg}, s{ptr_lo}, {off}")
            self(f"s_addc_u32 s{sreg+1}, s{ptr_lo+1}, 0")
        else:
            self(f"s_mov_b32 s{sreg}, s{ptr_lo}")
            self(f"s_mov_b32 s{sreg+1}, s{ptr_lo+1}")
        self(f"s_and_b32 s{sreg+1}, s{sreg+1}, 0xffff")
        self(f"s_mov_b32 s{sreg+2}, {size}")
        self(f"s_mov_b32 s{sreg+3}, 0x00020000")


def kernel_footer(a, name, vgprs):
    a.raw(".section .rodata,\"a\"")
    a.raw(".p2align 6")
    a.raw(f".amdhsa_kernel {name}")
    a.raw(f"  .amdhsa_next_free_vgpr {vgprs}")
    a.raw("  .amdhsa_next_free_sgpr 102")
    a.raw(f"  .amdhsa_accum_offset {((vgprs + 3) // 4) * 4}")
    a.raw("  .amdhsa_group_segment_fixed_size 0")
    a.raw("  .amdhsa_kernarg_size 136")
    a.raw("  .amdhsa_user_sgpr_count 2")
    a.raw("  .amdhsa_user_sgpr_kernarg_segment_ptr 1")
    a.raw("  .amdhsa_system_sgpr_workgroup_id_x 1")
    a.raw(".end_amdhsa_kernel")
    a.raw(".text")


def kernel_header(a, name):
    a.raw(f".globl {name}")
    a.raw(".p2align 8")
    a.raw(f".type {name},@function")
    a.label(name)


def emit_lane_ids(a):
    a("v_and_b32 v1, 63, v0")
    a("v_lshrrev_b32 v2, 6, v0")
    a("s_nop 0")
    a("v_readfirstlane_b32 s40, v2")
    a("s_and_b32 s41, s40, 1")
    a("s_lshr_b32 s42, s40, 1")


def emit_dma_voffsets(a, vdst0, vdst1, pitch, colbyte_sgpr, kind, tmp=2):
    t0, t1, t2 = tmp, tmp + 1, tmp + 2
    for ins, vd in ((0, vdst0), (1, vdst1)):
        a(f"v_lshrrev_b32 v{t0}, 3, v1")
        a(f"s_lshl_b32 s43, s40, 4")
        if ins:
            a(f"s_add_u32 s43, s43, 8")
        a(f"v_add_u32 v{t0}, s43, v{t0}")
        a(f"v_and_b32 v{t1}, 7, v1")
        a(f"v_lshrrev_b32 v{t2}, 1, v{t0}")
        if kind == 'plain':
            a(f"v_and_b32 v{t2}, 7, v{t2}")
        else:
            a(f"v_and_b32 v{t2}, 1, v{t2}")
            a(f"v_lshlrev_b32 v{t2}, 2, v{t2}")
        a(f"v_xor_b32 v{t1}, v{t1}, v{t2}")
        a(f"v_lshlrev_b32 v{t1}, 4, v{t1}")
        a(f"s_mov_b32 s43, {pitch}")
        a(f"v_mul_lo_u32 v{t0}, v{t0}, s43")
        a(f"v_add_u32 v{vd}, v{t0}, v{t1}")
        if colbyte_sgpr is not None:
            a(f"v_add_u32 v{vd}, s{colbyte_sgpr}, v{vd}")


def emit_tr_read_addr(a, vlo, vhi, wsel_sgpr, tmp=2):
    t0, t1, t2, t3 = tmp, tmp + 1, tmp + 2, tmp + 3
    a(f"v_lshrrev_b32 v{t0}, 4, v1")
    a(f"v_and_b32 v{t1}, 15, v1")
    a(f"v_lshrrev_b32 v{t2}, 2, v{t1}")
    a(f"v_and_b32 v{t3}, 3, v{t1}")
    a(f"v_lshrrev_b32 v{vlo}, 1, v{t0}")
    a(f"v_lshlrev_b32 v{vlo}, 3, v{vlo}")
    a(f"v_add_u32 v{vlo}, v{vlo}, v{t2}")
    a(f"v_lshlrev_b32 v{vlo}, 7, v{vlo}")
    a(f"v_and_b32 v{t0}, 1, v{t0}")
    a(f"v_lshlrev_b32 v{t0}, 1, v{t0}")
    a(f"v_lshrrev_b32 v{t1}, 1, v{t3}")
    a(f"v_add_u32 v{t0}, v{t0}, v{t1}")
    a(f"s_lshl_b32 s43, s{wsel_sgpr}, 2")
    a(f"v_add_u32 v{t0}, s43, v{t0}")
    a(f"v_lshrrev_b32 v{t2}, 1, v{t2}")
    a(f"v_and_b32 v{t2}, 1, v{t2}")
    a(f"v_lshlrev_b32 v{t2}, 2, v{t2}")
    a(f"v_xor_b32 v{t0}, v{t0}, v{t2}")
    a(f"v_lshlrev_b32 v{t0}, 4, v{t0}")
    a(f"v_add_u32 v{vlo}, v{vlo}, v{t0}")
    a(f"v_and_b32 v{t3}, 1, v{t3}")
    a(f"v_lshlrev_b32 v{t3}, 3, v{t3}")
    a(f"v_add_u32 v{vlo}, v{vlo}, v{t3}")
    a(f"v_add_u32 v{vhi}, 0x10000, v{vlo}")


def emit_plain_read_addr(a, vlo4, vhi4, wsel_sgpr, tmp=2):
    t0, t1, t2 = tmp, tmp + 1, tmp + 2
    a(f"v_and_b32 v{t0}, 31, v1")
    a(f"s_lshl_b32 s43, s{wsel_sgpr}, 5")
    a(f"v_add_u32 v{t0}, s43, v{t0}")
    a(f"v_lshrrev_b32 v{t1}, 1, v{t0}")
    a(f"v_and_b32 v{t1}, 7, v{t1}")
    a(f"v_lshlrev_b32 v{t0}, 7, v{t0}")
    a(f"v_lshrrev_b32 v{t2}, 5, v1")
    for kk in range(4):
        a(f"v_add_u32 v{vlo4+kk}, {2*kk}, v{t2}")
        a(f"v_xor_b32 v{vlo4+kk}, v{vlo4+kk}, v{t1}")
        a(f"v_lshlrev_b32 v{vlo4+kk}, 4, v{vlo4+kk}")
        a(f"v_add_u32 v{vlo4+kk}, v{vlo4+kk}, v{t0}")
        a(f"v_add_u32 v{vhi4+kk}, 0x10000, v{vlo4+kk}")


def emit_dma_tile(a, tag, vo0, vo1, srd, soff_sgpr, lds_off):
    for ins, vo in ((0, vo0), (1, vo1)):
        a(f"s_add_u32 m0, s44, {lds_off + ins*1024}")
        a("s_nop 0")
        a(f"buffer_load_dwordx4 v{vo}, s[{srd}:{srd+3}], s{soff_sgpr} offen lds")
        a.vm_issue(tag)


def emit_round_bf16(a, dst, src):
    a(f"v_cvt_pk_bf16_f32 v{dst}, v{src}, v{src}")
    a(f"v_lshlrev_b32 v{dst}, 16, v{dst}")


def emit_lambar(a, vLre, vLim, vLdt, vAr, vAi, t):
    a(f"s_mov_b32 s43, {f2u(LOG2E)}")
    a(f"v_mul_f32 v{t}, s43, v{vLdt}")
    a(f"v_exp_f32 v{t}, v{t}")
    a("s_nop 0")
    emit_round_bf16(a, t, t)
    a(f"v_mul_f32 v{t+1}, v{t}, v{vLre}")
    a(f"v_mul_f32 v{t+2}, v{t}, v{vLim}")
    a(f"v_mul_f32 v{t+1}, s43, v{t+1}")
    a(f"v_exp_f32 v{t+1}, v{t+1}")
    a(f"v_mul_f32 v{t+2}, 0.15915494, v{t+2}")
    a(f"v_fract_f32 v{t+3}, v{t+2}")
    a(f"v_cos_f32 v{vAr}, v{t+3}")
    a(f"v_sin_f32 v{vAi}, v{t+3}")
    a("s_nop 0")
    a(f"v_mul_f32 v{vAr}, v{vAr}, v{t+1}")
    a(f"v_mul_f32 v{vAi}, v{vAi}, v{t+1}")


def cmul(a, dr, di, ar, ai, br, bi, t):
    a(f"v_mul_f32 v{t}, v{ai}, v{bi}")
    a(f"v_mul_f32 v{di}, v{ar}, v{bi}")
    a(f"v_fma_f32 v{dr}, v{ar}, v{br}, -v{t}")
    a(f"v_fma_f32 v{di}, v{ai}, v{br}, v{di}")


def gen_k2(a):
    name = "k2_kernel"
    kernel_header(a, name)
    a("s_cmp_ge_u32 s2, 256")
    a("s_cbranch_scc1 k2_end")
    a("s_load_dwordx2 s[24:25], s[0:1], 80")
    a("s_load_dwordx2 s[26:27], s[0:1], 88")
    a("s_load_dwordx2 s[28:29], s[0:1], 128")
    a("s_load_dwordx4 s[48:51], s[0:1], 8")
    a("s_load_dwordx2 s[52:53], s[0:1], 56")
    a("s_and_b32 s30, s2, 7")
    a("s_lshr_b32 s31, s2, 3")
    a("s_lshr_b32 s32, s31, 3")
    a("s_and_b32 s33, s31, 7")
    a("s_lshl_b32 s34, s32, 3")
    a("s_add_u32 s34, s34, s30")
    emit_lane_ids(a)
    a("s_waitcnt lgkmcnt(0)")
    a("s_cmp_ge_u32 s30, 4")
    a("s_cbranch_scc0 k2_gemm")
    a("s_cmp_ge_u32 s31, 24")
    a("s_cbranch_scc1 k2_fixup")
    a.label("k2_gemm")
    a.srd(4, 28, WS_H2, SZ_H2)
    a.srd(8, 24, 0, 2048 * 1792 * 2)
    a.srd(12, 28, WS_GU, SZ_GU)
    a.srd(16, 26, 0, 1792 * 2)
    VA0, VA1, VB0, VB1 = 10, 11, 12, 13
    RA_LO, RA_HI, RB_LO, RB_HI = 14, 15, 16, 17
    ACC = 32
    FR = 64
    a("s_lshl_b32 s45, s33, 7")
    a("s_lshl_b32 s46, s34, 7")
    emit_dma_voffsets(a, VA0, VA1, 1024, 45, 'tr')
    emit_dma_voffsets(a, VB0, VB1, 3584, 46, 'tr')
    emit_tr_read_addr(a, RA_LO, RA_HI, 41)
    emit_tr_read_addr(a, RB_LO, RB_HI, 42)
    a("s_lshl_b32 s44, s40, 11")
    a("v_and_b32 v2, 31, v1")
    a("s_lshl_b32 s43, s42, 5")
    a("v_add_u32 v2, s43, v2")
    a("s_lshl_b32 s43, s34, 6")
    a("v_add_u32 v21, s43, v2")
    a("v_lshlrev_b32 v2, 1, v21")
    a("buffer_load_ushort v20, v2, s[16:19], 0 offen")
    a.vm_issue("bias")
    for r in range(16):
        a(f"v_mov_b32 v{ACC+r}, 0")
    D, T = 8, 32
    SA, SB = 20, 21

    def dma(t):
        slot = t % D
        a(f"s_mov_b32 s{SA}, {65536*t}")
        a(f"s_mov_b32 s{SB}, {229376*t}")
        emit_dma_tile(a, ("t", t), VA0, VA1, 4, SA, slot * 16384)
        emit_dma_tile(a, ("t", t), VB0, VB1, 8, SB, slot * 16384 + 8192)

    def reads(t):
        slot = t % D
        buf = t & 1
        hi = slot >= 4
        base = (slot - 4 if hi else slot) * 16384
        for kk in range(4):
            for h in range(2):
                fa = FR + 32 * buf + 4 * kk + 2 * h
                fb = FR + 32 * buf + 16 + 4 * kk + 2 * h
                a(f"ds_read_b64_tr_b16 v[{fa}:{fa+1}], v{RA_HI if hi else RA_LO} offset:{base + kk*2048 + h*512}")
                a(f"ds_read_b64_tr_b16 v[{fb}:{fb+1}], v{RB_HI if hi else RB_LO} offset:{base + 8192 + kk*2048 + h*512}")

    def mfmas(t):
        buf = t & 1
        for kk in range(4):
            fa = FR + 32 * buf + 4 * kk
            fb = FR + 32 * buf + 16 + 4 * kk
            a(f"v_mfma_f32_32x32x16_bf16 v[{ACC}:{ACC+15}], v[{fa}:{fa+3}], v[{fb}:{fb+3}], v[{ACC}:{ACC+15}]")

    for t in range(D):
        dma(t)
    a.vm_wait(("t", 0))
    a("s_barrier")
    reads(0)
    for t in range(T):
        if t + 1 < T:
            a.vm_wait(("t", t + 1))
        a("s_waitcnt lgkmcnt(0)")
        a("s_barrier")
        if t + D < T:
            dma(t + D)
        if t + 1 < T:
            reads(t + 1)
        mfmas(t)
    a.vm_wait_all()
    a("v_lshlrev_b32 v20, 16, v20")
    a("v_lshrrev_b32 v2, 5, v1")
    a("v_lshlrev_b32 v2, 2, v2")
    a("s_lshl_b32 s43, s41, 5")
    a("v_add_u32 v2, s43, v2")
    a("s_lshl_b32 s43, s33, 6")
    a("v_add_u32 v2, s43, v2")
    a("s_mov_b32 s43, 3584")
    a("v_mul_lo_u32 v2, v2, s43")
    a("v_lshlrev_b32 v3, 1, v21")
    a("v_add_u32 v22, v2, v3")
    a.nop(12)
    C0 = 0.7978845608028654
    a(f"s_mov_b32 s47, {f2u(C0*0.044715)}")
    a(f"s_mov_b32 s54, {f2u(C0)}")
    a(f"s_mov_b32 s55, {f2u(-2.0*LOG2E)}")
    for r in range(16):
        u, t1, t2 = 4, 5, 6
        emit_round_bf16(a, u, ACC + r)
        a(f"v_add_f32 v{u}, v{u}, v20")
        emit_round_bf16(a, u, u)
        a(f"v_mul_f32 v{t1}, v{u}, v{u}")
        a(f"v_mov_b32 v{t2}, s54")
        a(f"v_fma_f32 v{t1}, v{t1}, s47, v{t2}")
        a(f"v_mul_f32 v{t1}, v{t1}, v{u}")
        a(f"v_mul_f32 v{t1}, s55, v{t1}")
        a(f"v_exp_f32 v{t1}, v{t1}")
        a("s_nop 0")
        a(f"v_add_f32 v{t1}, 1.0, v{t1}")
        a(f"v_rcp_f32 v{t1}, v{t1}")
        a("s_nop 0")
        a(f"v_mul_f32 v{t1}, v{t1}, v{u}")
        a(f"v_cvt_pk_bf16_f32 v{t1}, v{t1}, v{t1}")
        rowoff = (8 * (r >> 2) + (r & 3)) * 3584
        if rowoff:
            a(f"v_add_u32 v{t2}, {rowoff}, v22")
            a(f"buffer_store_short v{t1}, v{t2}, s[12:15], 0 offen")
        else:
            a(f"buffer_store_short v{t1}, v22, s[12:15], 0 offen")
    a("s_branch k2_end")

    a.label("k2_fixup")
    a("s_sub_u32 s56, s30, 4")
    a("s_lshl_b32 s56, s56, 3")
    a("s_add_u32 s56, s56, s31")
    a("s_sub_u32 s56, s56, 24")
    a.srd(4, 28, WS_HLOC, SZ_HLOC)
    a.srd(8, 28, WS_E, SZ_E)
    a.srd(12, 28, WS_HFIN, SZ_HFIN)
    a.srd(16, 48, 0, 1024)
    a.srd(60, 50, 0, 1024)
    a.srd(64, 52, 0, 1024)
    a("v_lshlrev_b32 v2, 2, v0")
    a("buffer_load_dword v3, v2, s[16:19], 0 offen")
    a("buffer_load_dword v4, v2, s[60:63], 0 offen")
    a("buffer_load_dword v5, v2, s[64:67], 0 offen")
    a("v_lshlrev_b32 v6, 3, v0")
    EB = 128
    for j in range(31):
        a(f"s_mov_b32 s43, {j*4096}")
        a(f"buffer_load_dwordx2 v[{EB+4*j}:{EB+4*j+1}], v6, s[8:11], s43 offen")
        a(f"buffer_load_dwordx2 v[{EB+4*j+2}:{EB+4*j+3}], v6, s[8:11], s43 offen offset:2048")
    a("s_waitcnt vmcnt(62)")
    LR0, LR1, LI0, LI1, LD0, LD1 = 8, 9, 10, 11, 12, 13
    for (src, d0, d1) in ((3, LR0, LR1), (4, LI0, LI1), (5, LD0, LD1)):
        a(f"v_lshlrev_b32 v{d0}, 16, v{src}")
        a(f"v_and_b32 v{d1}, 0xffff0000, v{src}")
    AR0, AI0, AR1, AI1 = 14, 15, 16, 17
    emit_lambar(a, LR0, LI0, LD0, AR0, AI0, 20)
    emit_lambar(a, LR1, LI1, LD1, AR1, AI1, 20)
    PR0, PI0, PR1, PI1 = 24, 25, 26, 27
    for (ar, ai, pr, pi) in ((AR0, AI0, PR0, PI0), (AR1, AI1, PR1, PI1)):
        a(f"v_mov_b32 v{pr}, v{ar}")
        a(f"v_mov_b32 v{pi}, v{ai}")
        for _ in range(6):
            a(f"v_mul_f32 v20, v{pi}, v{pi}")
            a(f"v_mul_f32 v21, v{pr}, v{pi}")
            a(f"v_fma_f32 v{pr}, v{pr}, v{pr}, -v20")
            a(f"v_add_f32 v{pi}, v21, v21")
    CR0, CI0, CR1, CI1 = 28, 29, 30, 31
    for r in (CR0, CI0, CR1, CI1):
        a(f"v_mov_b32 v{r}, 0")
    a("s_waitcnt vmcnt(0)")
    for j in range(31):
        a(f"s_cmp_le_u32 s56, {j}")
        a("s_cbranch_scc1 k2_carry_done")
        e = EB + 4 * j
        for (pr, pi, cr, ci, er, ei) in ((PR0, PI0, CR0, CI0, e, e + 2), (PR1, PI1, CR1, CI1, e + 1, e + 3)):
            a(f"v_fma_f32 v20, v{pr}, v{cr}, v{er}")
            a(f"v_fma_f32 v21, v{pr}, v{ci}, v{ei}")
            a(f"v_fma_f32 v20, -v{pi}, v{ci}, v20")
            a(f"v_fma_f32 v21, v{pi}, v{cr}, v21")
            a(f"v_mov_b32 v{cr}, v20")
            a(f"v_mov_b32 v{ci}, v21")
    a.label("k2_carry_done")
    a("s_lshl_b32 s57, s56, 18")
    a("v_lshlrev_b32 v6, 3, v0")
    a("v_mov_b32 v7, s57")
    a("v_add_u32 v6, v7, v6")
    a("s_lshl_b32 s57, s56, 17")
    a("v_lshlrev_b32 v7, 2, v0")
    a("v_mov_b32 v2, s57")
    a("v_add_u32 v7, v2, v7")
    HB = 64
    a.vmq = []
    for batch in range(4):
        for t in range(16):
            row = batch * 16 + t
            a(f"s_mov_b32 s43, {row*4096}")
            a(f"buffer_load_dwordx2 v[{HB+4*t}:{HB+4*t+1}], v6, s[4:7], s43 offen")
            a.vm_issue(("h", row))
            a(f"buffer_load_dwordx2 v[{HB+4*t+2}:{HB+4*t+3}], v6, s[4:7], s43 offen offset:2048")
            a.vm_issue(("h", row))
        for t in range(16):
            row = batch * 16 + t
            a.vm_wait(("h", row))
            h = HB + 4 * t
            for (ar, ai, cr, ci) in ((AR0, AI0, CR0, CI0), (AR1, AI1, CR1, CI1)):
                a(f"v_mul_f32 v20, v{ai}, v{ci}")
                a(f"v_mul_f32 v21, v{ai}, v{cr}")
                a(f"v_fma_f32 v{cr}, v{ar}, v{cr}, -v20")
                a(f"v_fma_f32 v{ci}, v{ar}, v{ci}, v21")
            a(f"v_add_f32 v{h}, v{h}, v{CR0}")
            a(f"v_add_f32 v{h+1}, v{h+1}, v{CR1}")
            a(f"v_add_f32 v{h+2}, v{h+2}, v{CI0}")
            a(f"v_add_f32 v{h+3}, v{h+3}, v{CI1}")
            o = 32 + 2 * (t & 7)
            a(f"v_cvt_pk_bf16_f32 v{o}, v{h}, v{h+1}")
            a(f"v_cvt_pk_bf16_f32 v{o+1}, -v{h+2}, -v{h+3}")
            a(f"s_mov_b32 s43, {row*2048}")
            a(f"buffer_store_dword v{o}, v7, s[12:15], s43 offen")
            a.vm_issue("st")
            a(f"buffer_store_dword v{o+1}, v7, s[12:15], s43 offen offset:1024")
            a.vm_issue("st")
    a.label("k2_end")
    a("s_endpgm")
    kernel_footer(a, name, 256)


def main():
    a = Asm()
    hdr = open(OUT + ".ref").read().split("\n")
    for line in hdr:
        if line.startswith("; @launch"):
            break
        a.raw(line)
    which = sys.argv[1] if len(sys.argv) > 1 else "123"
    if "1" in which:
        a.raw("; @launch kernel=k1_kernel grid=(256,1,1) block=(256,1,1) lds=131072")
    if "2" in which:
        a.raw("; @launch kernel=k2_kernel grid=(256,1,1) block=(256,1,1) lds=131072")
    if "3" in which:
        a.raw("; @launch kernel=k3_kernel grid=(256,1,1) block=(256,1,1) lds=131072")
    a.raw(".amdgcn_target \"amdgcn-amd-amdhsa--gfx950\"")
    a.raw(".text")
    if "1" in which:
        import gen_k1
        gen_k1.gen_k1(a)
    if "2" in which:
        gen_k2(a)
    if "3" in which:
        import gen_k3
        gen_k3.gen_k3(a)
    open(OUT, "w").write("\n".join(a.lines) + "\n")


if __name__ == "__main__":
    main()
```

```python
from gen import *


def reduce8(a, v):
    a.nop(2)
    a(f"v_add_f32_dpp v{v}, v{v}, v{v} quad_perm:[1,0,3,2] row_mask:0xf bank_mask:0xf")
    a.nop(2)
    a(f"v_add_f32_dpp v{v}, v{v}, v{v} quad_perm:[2,3,0,1] row_mask:0xf bank_mask:0xf")
    a.nop(2)
    a(f"v_add_f32_dpp v{v}, v{v}, v{v} row_half_mirror row_mask:0xf bank_mask:0xf")


def emit_coef(a, vch_off, S_LRE, S_LIM, S_LDT, ar, ai, t, cr=None, ci=None):
    lr, li, ld = t + 4, t + 5, t + 6
    a(f"buffer_load_ushort v{lr}, v{vch_off}, s[{S_LRE}:{S_LRE+3}], 0 offen")
    a(f"buffer_load_ushort v{li}, v{vch_off}, s[{S_LIM}:{S_LIM+3}], 0 offen")
    a(f"buffer_load_ushort v{ld}, v{vch_off}, s[{S_LDT}:{S_LDT+3}], 0 offen")
    a("s_waitcnt vmcnt(0)")
    for r in (lr, li, ld):
        a(f"v_lshlrev_b32 v{r}, 16, v{r}")
    emit_lambar(a, lr, li, ld, ar, ai, t)
    if cr is not None:
        nr, inv = t, t + 1
        a(f"v_add_f32 v{nr}, -1.0, v{ar}")
        a(f"v_mul_f32 v{inv}, v{lr}, v{lr}")
        a(f"v_fma_f32 v{inv}, v{li}, v{li}, v{inv}")
        a(f"v_rcp_f32 v{inv}, v{inv}")
        a(f"v_mul_f32 v{cr}, v{nr}, v{lr}")
        a(f"v_fma_f32 v{cr}, v{ai}, v{li}, v{cr}")
        a(f"v_mul_f32 v{ci}, v{ai}, v{lr}")
        a(f"v_fma_f32 v{ci}, -v{nr}, v{li}, v{ci}")
        a(f"v_mul_f32 v{cr}, v{cr}, v{inv}")
        a(f"v_mul_f32 v{ci}, v{ci}, v{inv}")


def gen_k1(a):
    name = "k1_kernel"
    kernel_header(a, name)
    a.vmq = []
    a("s_cmp_ge_u32 s2, 256")
    a("s_cbranch_scc1 k1_end")
    a("s_load_dwordx2 s[24:25], s[0:1], 0")
    a("s_load_dwordx4 s[68:71], s[0:1], 8")
    a("s_load_dwordx4 s[72:75], s[0:1], 24")
    a("s_load_dwordx2 s[76:77], s[0:1], 56")
    a("s_load_dwordx2 s[28:29], s[0:1], 128")
    a("s_and_b32 s30, s2, 7")
    a("s_lshr_b32 s31, s2, 3")
    a("s_lshr_b32 s32, s31, 3")
    a("s_lshl_b32 s33, s30, 2")
    a("s_add_u32 s33, s33, s32")
    a("s_and_b32 s34, s31, 7")
    emit_lane_ids(a)
    a("s_waitcnt lgkmcnt(0)")
    S_X, S_BR, S_BI, S_XN, S_H2, S_HL, S_E, S_LRE, S_LIM, S_LDT = 4, 8, 12, 16, 20, 48, 52, 56, 60, 64
    a.srd(S_X, 24, 0, 2048 * 512 * 2)
    a.srd(S_BR, 72, 0, 512 * 512 * 2)
    a.srd(S_BI, 74, 0, 512 * 512 * 2)
    a.srd(S_XN, 28, WS_XN, SZ_XN)
    a.srd(S_H2, 28, WS_H2, SZ_H2)
    a.srd(S_HL, 28, WS_HLOC, SZ_HLOC)
    a.srd(S_E, 28, WS_E, SZ_E)
    a.srd(S_LRE, 68, 0, 1024)
    a.srd(S_LIM, 70, 0, 1024)
    a.srd(S_LDT, 76, 0, 1024)
    for i in range(8):
        a(f"s_add_u32 s{80+i}, s34, {i}")
        a(f"s_and_b32 s{80+i}, s{80+i}, 7")
        a(f"s_lshl_b32 s{88+i}, s{80+i}, 13")
        a(f"s_lshl_b32 s{80+i}, s{80+i}, 7")
    a.stamp(0)
    VX0, VX1 = 10, 11
    VL0, VL1 = 12, 13
    VB0, VB1 = 14, 15
    RPA_LO, RPA_HI = 16, 20
    RPB_LO, RPB_HI = 24, 28
    XB = 64
    DB = 128
    a("v_lshrrev_b32 v2, 3, v1")
    a("v_and_b32 v3, 7, v1")
    for p, (vx, vl) in enumerate(((VX0, VL0), (VX1, VL1))):
        a(f"s_lshl_b32 s43, s40, 4")
        a(f"s_add_u32 s43, s43, {8*p}")
        a(f"v_add_u32 v4, s43, v2")
        a(f"s_lshl_b32 s43, s33, 6")
        a(f"v_add_u32 v5, s43, v4")
        a(f"v_lshlrev_b32 v5, 10, v5")
        a(f"v_lshlrev_b32 v6, 4, v3")
        a(f"v_add_u32 v{vx}, v5, v6")
        a(f"v_lshrrev_b32 v5, 1, v4")
        a(f"v_and_b32 v5, 7, v5")
        a(f"v_xor_b32 v5, v5, v3")
        a(f"v_lshlrev_b32 v5, 4, v5")
        a(f"v_lshlrev_b32 v6, 7, v4")
        a(f"v_add_u32 v{vl}, v5, v6")
    for p, vx in enumerate((VX0, VX1)):
        for i in range(8):
            r = XB + 32 * p + 4 * i
            a(f"buffer_load_dwordx4 v[{r}:{r+3}], v{vx}, s[{S_X}:{S_X+3}], s{80+i} offen")
            a.vm_issue(("x", p))
    a("s_lshl_b32 s45, s34, 16")
    emit_dma_voffsets(a, VB0, VB1, 1024, 45, 'plain')
    a("s_lshl_b32 s44, s40, 11")
    D, T = 4, 8
    SB = 79

    def dma(t):
        slot = t % D
        a(f"s_mov_b32 s{SB}, {128*t}")
        emit_dma_tile(a, ("t", t), VB0, VB1, S_BR, SB, 65536 + slot * 16384)
        emit_dma_tile(a, ("t", t), VB0, VB1, S_BI, SB, 65536 + slot * 16384 + 8192)

    for t in range(D):
        dma(t)
    emit_plain_read_addr(a, RPA_LO, RPA_HI, 41)
    emit_plain_read_addr(a, RPB_LO, RPB_HI, 42)
    if "nopf" not in EXP:
        a("s_load_dwordx2 s[96:97], s[0:1], 80")
        a("s_lshl_b32 s43, s32, 3")
        a("s_add_u32 s43, s43, s30")
        a("s_min_u32 s43, s43, 27")
        a("s_waitcnt lgkmcnt(0)")
        a.srd(96, 96, 0, 2048 * 1792 * 2)
        a("s_lshl_b32 s45, s34, 8")
        a("v_add_u32 v2, s45, v0")
        a("s_mov_b32 s45, 3584")
        a("v_mul_lo_u32 v2, v2, s45")
        a("s_lshl_b32 s43, s43, 7")
        a("v_add_u32 v2, s43, v2")
        for q in range(8):
            a(f"buffer_load_dwordx4 v[{224+4*(q&3)}:{227+4*(q&3)}], v2, s[96:99], 0 offen offset:{16*q}")
            a.vm_issue("pf")
        pass
    a("s_mov_b32 s46, 0x3f803f80")
    a(f"s_mov_b32 s47, {f2u(1.0/512)}")
    a(f"s_mov_b32 s96, {f2u(1e-5)}")
    S0, S1, S2, S3 = 2, 3, 4, 5
    MP = 6
    SS = 8
    for p in range(2):
        vx, vl = (VX0, VL0) if p == 0 else (VX1, VL1)
        X = [XB + 32 * p + 4 * i for i in range(8)]
        a.vm_wait(("x", p))
        a.stamp(1 + p)
        for k in range(4):
            a(f"v_mov_b32 v{S0+k}, 0")
        for i in range(8):
            for k in range(4):
                a(f"v_dot2_f32_bf16 v{S0+k}, v{X[i]+k}, s46, v{S0+k}")
        a.nop(3)
        a(f"v_add_f32 v{S0}, v{S0}, v{S1}")
        a(f"v_add_f32 v{S2}, v{S2}, v{S3}")
        a(f"v_add_f32 v{S0}, v{S0}, v{S2}")
        reduce8(a, S0)
        a(f"v_mul_f32 v{S0}, s47, v{S0}")
        emit_round_bf16(a, S1, S0)
        a(f"v_sub_f32 v{S2}, v{S0}, v{S1}")
        a(f"v_sub_f32 v{MP}, 0, v{S1}")
        a(f"v_sub_f32 v{MP+1}, 0, v{S1}")
        for k in range(4):
            a(f"v_mov_b32 v{32+2*k}, 0")
            a(f"v_mov_b32 v{33+2*k}, 0")
        n = 0
        for i in range(8):
            for k in range(4):
                d = DB + 2 * n
                a(f"v_lshlrev_b32 v{d}, 16, v{X[i]+k}")
                a(f"v_and_b32 v{d+1}, 0xffff0000, v{X[i]+k}")
                a(f"v_pk_add_f32 v[{d}:{d+1}], v[{d}:{d+1}], v[{MP}:{MP+1}]")
                acc = 32 + 2 * (n & 3)
                a(f"v_pk_fma_f32 v[{acc}:{acc+1}], v[{d}:{d+1}], v[{d}:{d+1}], v[{acc}:{acc+1}]")
                n += 1
        a("v_pk_add_f32 v[32:33], v[32:33], v[34:35]")
        a("v_pk_add_f32 v[36:37], v[36:37], v[38:39]")
        a("v_pk_add_f32 v[32:33], v[32:33], v[36:37]")
        a(f"v_add_f32 v{S3}, v32, v33")
        reduce8(a, S3)
        a(f"v_mul_f32 v{S3}, s47, v{S3}")
        a(f"v_fma_f32 v{S3}, -v{S2}, v{S2}, v{S3}")
        emit_round_bf16(a, S3, S3)
        a(f"v_add_f32 v{S3}, s96, v{S3}")
        emit_round_bf16(a, S3, S3)
        a(f"v_sqrt_f32 v{S3}, v{S3}")
        a("s_nop 0")
        emit_round_bf16(a, S3, S3)
        a(f"v_rcp_f32 v{MP}, v{S3}")
        a("s_nop 0")
        a(f"v_mov_b32 v{MP+1}, v{MP}")
        n = 0
        for i in range(8):
            for k in range(4):
                d = DB + 2 * n
                x = X[i] + k
                a(f"v_cvt_pk_bf16_f32 v{x}, v{d}, v{d+1}")
                a(f"v_lshlrev_b32 v{d}, 16, v{x}")
                a(f"v_and_b32 v{d+1}, 0xffff0000, v{x}")
                a(f"v_pk_mul_f32 v[{d}:{d+1}], v[{d}:{d+1}], v[{MP}:{MP+1}]")
                a(f"v_cvt_pk_bf16_f32 v{x}, v{d}, v{d+1}")
                n += 1
        for i in range(8):
            a(f"v_add_u32 v2, s{88+i}, v{vl}")
            a(f"ds_write_b128 v2, v[{X[i]}:{X[i]+3}]")
        a(f"buffer_store_dwordx4 v[{X[0]}:{X[0]+3}], v{vx}, s[{S_XN}:{S_XN+3}], s80 offen")
        a.vm_issue("st")
        for k in range(4):
            a(f"v_mov_b32 v{S0+k}, 0")
            a(f"v_mov_b32 v{32+k}, 0")
        for i in range(8):
            for k in range(4):
                a(f"v_dot2_f32_bf16 v{S0+k}, v{X[i]+k}, s46, v{S0+k}")
                a(f"v_dot2_f32_bf16 v{32+k}, v{X[i]+k}, v{X[i]+k}, v{32+k}")
        a.nop(3)
        a(f"v_add_f32 v{S0}, v{S0}, v{S1}")
        a(f"v_add_f32 v{S2}, v{S2}, v{S3}")
        a(f"v_add_f32 v{S0}, v{S0}, v{S2}")
        a(f"v_add_f32 v32, v32, v33")
        a(f"v_add_f32 v34, v34, v35")
        a(f"v_add_f32 v32, v32, v34")
        reduce8(a, S0)
        reduce8(a, 32)
        a(f"v_mul_f32 v{S0}, s47, v{S0}")
        a(f"v_mul_f32 v32, s47, v32")
        a(f"v_fma_f32 v32, -v{S0}, v{S0}, v32")
        emit_round_bf16(a, S1, S0)
        emit_round_bf16(a, 32, 32)
        a(f"v_add_f32 v32, s96, v32")
        emit_round_bf16(a, 32, 32)
        a(f"v_sqrt_f32 v32, v32")
        a("s_nop 0")
        emit_round_bf16(a, 32, 32)
        a(f"v_rcp_f32 v34, v32")
        a(f"v_sub_f32 v{MP}, 0, v{S1}")
        a(f"v_sub_f32 v{MP+1}, 0, v{S1}")
        a(f"v_mov_b32 v35, v34")
        for k in range(4):
            x = X[0] + k
            d = DB + 2 * k
            a(f"v_lshlrev_b32 v{d}, 16, v{x}")
            a(f"v_and_b32 v{d+1}, 0xffff0000, v{x}")
            a(f"v_pk_add_f32 v[{d}:{d+1}], v[{d}:{d+1}], v[{MP}:{MP+1}]")
            a(f"v_cvt_pk_bf16_f32 v{36+k}, v{d}, v{d+1}")
            a(f"v_lshlrev_b32 v{d}, 16, v{36+k}")
            a(f"v_and_b32 v{d+1}, 0xffff0000, v{36+k}")
            a(f"v_pk_mul_f32 v[{d}:{d+1}], v[{d}:{d+1}], v[34:35]")
            a(f"v_cvt_pk_bf16_f32 v{36+k}, v{d}, v{d+1}")
        a(f"buffer_store_dwordx4 v[36:39], v{vx}, s[{S_H2}:{S_H2+3}], s80 offen")
        a.vm_issue("st")
        a.nop(2)
    a.stamp(3)
    ACR, ACI = 32, 48
    FR = 64
    for r in range(16):
        a(f"v_mov_b32 v{ACR+r}, 0")
        a(f"v_mov_b32 v{ACI+r}, 0")

    def reads(t):
        slot = t % D
        buf = t & 1
        for kk in range(4):
            f = FR + 48 * buf + 4 * kk
            a(f"ds_read_b128 v[{f}:{f+3}], v{RPA_LO+kk} offset:{t*8192}")
            a(f"ds_read_b128 v[{f+16}:{f+19}], v{RPB_HI+kk} offset:{slot*16384}")
            a(f"ds_read_b128 v[{f+32}:{f+35}], v{RPB_HI+kk} offset:{slot*16384+8192}")

    def mfmas(t):
        buf = t & 1
        for kk in range(4):
            f = FR + 48 * buf + 4 * kk
            a(f"v_mfma_f32_32x32x16_bf16 v[{ACR}:{ACR+15}], v[{f}:{f+3}], v[{f+16}:{f+19}], v[{ACR}:{ACR+15}]")
            a(f"v_mfma_f32_32x32x16_bf16 v[{ACI}:{ACI+15}], v[{f}:{f+3}], v[{f+32}:{f+35}], v[{ACI}:{ACI+15}]")

    a.vm_wait(("t", 0))
    a("s_waitcnt lgkmcnt(0)")
    a("s_barrier")
    reads(0)
    for t in range(T):
        if t + 1 < T:
            a.vm_wait(("t", t + 1))
        a("s_waitcnt lgkmcnt(0)")
        a("s_barrier")
        if t + D < T:
            dma(t + D)
        if t + 1 < T:
            reads(t + 1)
        mfmas(t)
    a.stamp(4)
    AR, AI, CR, CI = 2, 3, 4, 5
    a("v_and_b32 v10, 31, v1")
    a("s_lshl_b32 s43, s42, 5")
    a("v_add_u32 v10, s43, v10")
    a("s_lshl_b32 s43, s34, 6")
    a("v_add_u32 v11, s43, v10")
    a("v_lshlrev_b32 v11, 1, v11")
    emit_coef(a, 11, S_LRE, S_LIM, S_LDT, AR, AI, 12, CR, CI)
    a("v_lshrrev_b32 v11, 5, v1")
    a("v_lshlrev_b32 v11, 2, v11")
    a("s_lshl_b32 s43, s41, 5")
    a("v_add_u32 v11, s43, v11")
    a("v_lshlrev_b32 v11, 9, v11")
    a("v_lshlrev_b32 v10, 3, v10")
    a("v_add_u32 v11, v11, v10")
    a("s_barrier")
    for r in range(16):
        ro = 8 * (r >> 2) + (r & 3)
        a(f"v_mul_f32 v6, v{CI}, v{ACI+r}")
        a(f"v_mul_f32 v7, v{CI}, v{ACR+r}")
        a(f"v_fma_f32 v{ACR+r}, v{CR}, v{ACR+r}, -v6")
        a(f"v_fma_f32 v{ACI+r}, v{CR}, v{ACI+r}, v7")
    for r in range(16):
        ro = 8 * (r >> 2) + (r & 3)
        a(f"v_mov_b32 v6, v{ACR+r}")
        a(f"v_mov_b32 v7, v{ACI+r}")
        a(f"ds_write_b64 v11, v[6:7] offset:{ro*512}")
    a("s_lshl_b32 s43, s34, 6")
    a("v_add_u32 v10, s43, v1")
    a("v_lshlrev_b32 v10, 1, v10")
    emit_coef(a, 10, S_LRE, S_LIM, S_LDT, AR, AI, 12)
    a("s_waitcnt lgkmcnt(0)")
    a("s_barrier")
    BU = 64
    a("s_lshl_b32 s43, s40, 13")
    a("v_lshlrev_b32 v10, 3, v1")
    a("v_add_u32 v10, s43, v10")
    for t in range(16):
        a(f"ds_read_b64 v[{BU+2*t}:{BU+2*t+1}], v10 offset:{t*512}")
    HR, HI = 6, 7
    a(f"v_mov_b32 v{HR}, 0")
    a(f"v_mov_b32 v{HI}, 0")

    def scan_pass(store):
        for t in range(16):
            if not store:
                a(f"s_waitcnt lgkmcnt({15-t})")
            a(f"v_fma_f32 v8, -v{AI}, v{HI}, v{BU+2*t}")
            a(f"v_fma_f32 v9, v{AI}, v{HR}, v{BU+2*t+1}")
            a(f"v_fma_f32 v{HR}, v{AR}, v{HR}, v8")
            a(f"v_fma_f32 v{HI}, v{AR}, v{HI}, v9")
            if store:
                a(f"s_mov_b32 s43, {t*4096}")
                a(f"buffer_store_dword v{HR}, v12, s[{S_HL}:{S_HL+3}], s43 offen")
                a(f"buffer_store_dword v{HI}, v12, s[{S_HL}:{S_HL+3}], s43 offen offset:2048")

    a.stamp(5)
    scan_pass(False)
    a("s_lshl_b32 s43, s40, 9")
    a("v_lshlrev_b32 v11, 3, v1")
    a("v_add_u32 v13, s43, v11")
    a(f"ds_write_b64 v13, v[{HR}:{HI}] offset:32768")
    P0, P1 = 14, 15
    a(f"v_mov_b32 v{P0}, v{AR}")
    a(f"v_mov_b32 v{P1}, v{AI}")
    for _ in range(4):
        a(f"v_mul_f32 v8, v{P1}, v{P1}")
        a(f"v_mul_f32 v9, v{P0}, v{P1}")
        a(f"v_fma_f32 v{P0}, v{P0}, v{P0}, -v8")
        a(f"v_add_f32 v{P1}, v9, v9")
    a("s_waitcnt lgkmcnt(0)")
    a("s_barrier")
    for k in range(3):
        a(f"ds_read_b64 v[{16+2*k}:{17+2*k}], v11 offset:{32768 + k*512}")
    a(f"v_mov_b32 v{HR}, 0")
    a(f"v_mov_b32 v{HI}, 0")
    a("s_waitcnt lgkmcnt(0)")
    for k in range(3):
        a(f"s_cmp_le_u32 s40, {k}")
        a("s_cbranch_scc1 k1_carry_done")
        a(f"v_fma_f32 v8, -v{P1}, v{HI}, v{16+2*k}")
        a(f"v_fma_f32 v9, v{P1}, v{HR}, v{17+2*k}")
        a(f"v_fma_f32 v{HR}, v{P0}, v{HR}, v8")
        a(f"v_fma_f32 v{HI}, v{P0}, v{HI}, v9")
    a.label("k1_carry_done")
    a("s_lshl_b32 s43, s33, 6")
    a("s_lshl_b32 s45, s40, 4")
    a("s_add_u32 s43, s43, s45")
    a("s_lshl_b32 s43, s43, 12")
    a("s_lshl_b32 s45, s34, 8")
    a("s_add_u32 s43, s43, s45")
    a("v_lshlrev_b32 v12, 2, v1")
    a("v_add_u32 v12, s43, v12")
    scan_pass(True)
    a.stamp(6)
    a.stamp_store(7, 28)
    a("s_cmp_eq_u32 s40, 3")
    a("s_cbranch_scc0 k1_end")
    a("s_lshl_b32 s43, s33, 12")
    a("s_lshl_b32 s45, s34, 8")
    a("s_add_u32 s43, s43, s45")
    a("v_lshlrev_b32 v12, 2, v1")
    a("v_add_u32 v12, s43, v12")
    a(f"buffer_store_dword v{HR}, v12, s[{S_E}:{S_E+3}], 0 offen")
    a(f"buffer_store_dword v{HI}, v12, s[{S_E}:{S_E+3}], 0 offen offset:2048")
    a.label("k1_end")
    a("s_endpgm")
    kernel_footer(a, name, 256)
```

```python
import sys, os
EXP = os.environ.get("EXP", "")

OUT = "recurrent_scan__ssm_conv_s5__mixer_token_mlp__prompt.s"

WS_XN, WS_H2, WS_HLOC, WS_E, WS_HFIN, WS_GU = 0, 2 << 20, 4 << 20, 12 << 20, 13 << 20, 17 << 20
SZ_XN, SZ_H2, SZ_HLOC, SZ_E, SZ_HFIN, SZ_GU = 2 << 20, 2 << 20, 8 << 20, 32 * 1024 * 4, 4 << 20, 512 * 1792 * 2

LOG2E = 1.4426950408889634


def f2u(x):
    import struct
    return struct.unpack("<I", struct.pack("<f", x))[0]


class Asm:
    def __init__(self):
        self.lines = []
        self.vmq = []

    def __call__(self, s):
        self.lines.append("    " + s)

    def label(self, l):
        self.lines.append(l + ":")

    def raw(self, s):
        self.lines.append(s)

    def nop(self, n):
        while n > 0:
            k = min(n, 16)
            self(f"s_nop {k-1}")
            n -= k

    def vm_issue(self, tag):
        self.vmq.append(tag)

    def vm_wait(self, tag):
        if tag not in self.vmq:
            return
        idx = max(i for i, t in enumerate(self.vmq) if t == tag)
        n = len(self.vmq) - 1 - idx
        assert n <= 63
        self(f"s_waitcnt vmcnt({n})")
        self.vmq = self.vmq[idx + 1:]

    def vm_wait_all(self):
        self("s_waitcnt vmcnt(0)")
        self.vmq = []

    def stamp(self, i):
        if "stamp" not in EXP:
            return
        self("s_memtime s[98:99]")
        self("s_waitcnt lgkmcnt(0)")
        self(f"v_mov_b32 v{240+i}, s98")

    def stamp_store(self, n, ws_lo):
        if "stamp" not in EXP:
            return
        self("s_waitcnt vmcnt(0)")
        self(f"s_add_u32 s98, s{ws_lo}, {64<<20}")
        self(f"s_addc_u32 s99, s{ws_lo+1}, 0")
        self("s_lshl_b32 s97, s2, 8")
        self("s_lshl_b32 s96, s40, 6")
        self("s_add_u32 s97, s97, s96")
        self("v_mov_b32 v239, s97")
        for i in range(n):
            self(f"global_store_dword v239, v{240+i}, s[98:99] offset:{4*i}")
        self("s_waitcnt vmcnt(0)")

    def srd(self, sreg, ptr_lo, off, size):
        if off:
            self(f"s_add_u32 s{sreg}, s{ptr_lo}, {off}")
            self(f"s_addc_u32 s{sreg+1}, s{ptr_lo+1}, 0")
        else:
            self(f"s_mov_b32 s{sreg}, s{ptr_lo}")
            self(f"s_mov_b32 s{sreg+1}, s{ptr_lo+1}")
        self(f"s_and_b32 s{sreg+1}, s{sreg+1}, 0xffff")
        self(f"s_mov_b32 s{sreg+2}, {size}")
        self(f"s_mov_b32 s{sreg+3}, 0x00020000")


def kernel_footer(a, name, vgprs):
    a.raw(".section .rodata,\"a\"")
    a.raw(".p2align 6")
    a.raw(f".amdhsa_kernel {name}")
    a.raw(f"  .amdhsa_next_free_vgpr {vgprs}")
    a.raw("  .amdhsa_next_free_sgpr 102")
    a.raw(f"  .amdhsa_accum_offset {((vgprs + 3) // 4) * 4}")
    a.raw("  .amdhsa_group_segment_fixed_size 0")
    a.raw("  .amdhsa_kernarg_size 136")
    a.raw("  .amdhsa_user_sgpr_count 2")
    a.raw("  .amdhsa_user_sgpr_kernarg_segment_ptr 1")
    a.raw("  .amdhsa_system_sgpr_workgroup_id_x 1")
    a.raw(".end_amdhsa_kernel")
    a.raw(".text")


def kernel_header(a, name):
    a.raw(f".globl {name}")
    a.raw(".p2align 8")
    a.raw(f".type {name},@function")
    a.label(name)


def emit_lane_ids(a):
    a("v_and_b32 v1, 63, v0")
    a("v_lshrrev_b32 v2, 6, v0")
    a("s_nop 0")
    a("v_readfirstlane_b32 s40, v2")
    a("s_and_b32 s41, s40, 1")
    a("s_lshr_b32 s42, s40, 1")


def emit_dma_voffsets(a, vdst0, vdst1, pitch, colbyte_sgpr, kind, tmp=2):
    t0, t1, t2 = tmp, tmp + 1, tmp + 2
    for ins, vd in ((0, vdst0), (1, vdst1)):
        a(f"v_lshrrev_b32 v{t0}, 3, v1")
        a(f"s_lshl_b32 s43, s40, 4")
        if ins:
            a(f"s_add_u32 s43, s43, 8")
        a(f"v_add_u32 v{t0}, s43, v{t0}")
        a(f"v_and_b32 v{t1}, 7, v1")
        a(f"v_lshrrev_b32 v{t2}, 1, v{t0}")
        if kind == 'plain':
            a(f"v_and_b32 v{t2}, 7, v{t2}")
        else:
            a(f"v_and_b32 v{t2}, 1, v{t2}")
            a(f"v_lshlrev_b32 v{t2}, 2, v{t2}")
        a(f"v_xor_b32 v{t1}, v{t1}, v{t2}")
        a(f"v_lshlrev_b32 v{t1}, 4, v{t1}")
        a(f"s_mov_b32 s43, {pitch}")
        a(f"v_mul_lo_u32 v{t0}, v{t0}, s43")
        a(f"v_add_u32 v{vd}, v{t0}, v{t1}")
        if colbyte_sgpr is not None:
            a(f"v_add_u32 v{vd}, s{colbyte_sgpr}, v{vd}")


def emit_tr_read_addr(a, vlo, vhi, wsel_sgpr, tmp=2):
    t0, t1, t2, t3 = tmp, tmp + 1, tmp + 2, tmp + 3
    a(f"v_lshrrev_b32 v{t0}, 4, v1")
    a(f"v_and_b32 v{t1}, 15, v1")
    a(f"v_lshrrev_b32 v{t2}, 2, v{t1}")
    a(f"v_and_b32 v{t3}, 3, v{t1}")
    a(f"v_lshrrev_b32 v{vlo}, 1, v{t0}")
    a(f"v_lshlrev_b32 v{vlo}, 3, v{vlo}")
    a(f"v_add_u32 v{vlo}, v{vlo}, v{t2}")
    a(f"v_lshlrev_b32 v{vlo}, 7, v{vlo}")
    a(f"v_and_b32 v{t0}, 1, v{t0}")
    a(f"v_lshlrev_b32 v{t0}, 1, v{t0}")
    a(f"v_lshrrev_b32 v{t1}, 1, v{t3}")
    a(f"v_add_u32 v{t0}, v{t0}, v{t1}")
    a(f"s_lshl_b32 s43, s{wsel_sgpr}, 2")
    a(f"v_add_u32 v{t0}, s43, v{t0}")
    a(f"v_lshrrev_b32 v{t2}, 1, v{t2}")
    a(f"v_and_b32 v{t2}, 1, v{t2}")
    a(f"v_lshlrev_b32 v{t2}, 2, v{t2}")
    a(f"v_xor_b32 v{t0}, v{t0}, v{t2}")
    a(f"v_lshlrev_b32 v{t0}, 4, v{t0}")
    a(f"v_add_u32 v{vlo}, v{vlo}, v{t0}")
    a(f"v_and_b32 v{t3}, 1, v{t3}")
    a(f"v_lshlrev_b32 v{t3}, 3, v{t3}")
    a(f"v_add_u32 v{vlo}, v{vlo}, v{t3}")
    a(f"v_add_u32 v{vhi}, 0x10000, v{vlo}")


def emit_plain_read_addr(a, vlo4, vhi4, wsel_sgpr, tmp=2):
    t0, t1, t2 = tmp, tmp + 1, tmp + 2
    a(f"v_and_b32 v{t0}, 31, v1")
    a(f"s_lshl_b32 s43, s{wsel_sgpr}, 5")
    a(f"v_add_u32 v{t0}, s43, v{t0}")
    a(f"v_lshrrev_b32 v{t1}, 1, v{t0}")
    a(f"v_and_b32 v{t1}, 7, v{t1}")
    a(f"v_lshlrev_b32 v{t0}, 7, v{t0}")
    a(f"v_lshrrev_b32 v{t2}, 5, v1")
    for kk in range(4):
        a(f"v_add_u32 v{vlo4+kk}, {2*kk}, v{t2}")
        a(f"v_xor_b32 v{vlo4+kk}, v{vlo4+kk}, v{t1}")
        a(f"v_lshlrev_b32 v{vlo4+kk}, 4, v{vlo4+kk}")
        a(f"v_add_u32 v{vlo4+kk}, v{vlo4+kk}, v{t0}")
        a(f"v_add_u32 v{vhi4+kk}, 0x10000, v{vlo4+kk}")


_rot = [0]
def emit_dma_tile(a, tag, vo0, vo1, srd, soff_sgpr, lds_off):
    for ins, vo in ((0, vo0), (1, vo1)):
        if "vload" in EXP:
            r = 128 + 4 * (_rot[0] % 32); _rot[0] += 1
            a(f"buffer_load_dwordx4 v[{r}:{r+3}], v{vo}, s[{srd}:{srd+3}], s{soff_sgpr} offen")
        else:
            a(f"s_add_u32 m0, s44, {lds_off + ins*1024}")
            a("s_nop 0")
            a(f"buffer_load_dwordx4 v{vo}, s[{srd}:{srd+3}], s{soff_sgpr} offen lds")
        a.vm_issue(tag)


def emit_round_bf16(a, dst, src):
    a(f"v_cvt_pk_bf16_f32 v{dst}, v{src}, v{src}")
    a(f"v_lshlrev_b32 v{dst}, 16, v{dst}")


def emit_lambar(a, vLre, vLim, vLdt, vAr, vAi, t):
    a(f"s_mov_b32 s43, {f2u(LOG2E)}")
    a(f"v_mul_f32 v{t}, s43, v{vLdt}")
    a(f"v_exp_f32 v{t}, v{t}")
    a("s_nop 0")
    emit_round_bf16(a, t, t)
    a(f"v_mul_f32 v{t+1}, v{t}, v{vLre}")
    a(f"v_mul_f32 v{t+2}, v{t}, v{vLim}")
    a(f"v_mul_f32 v{t+1}, s43, v{t+1}")
    a(f"v_exp_f32 v{t+1}, v{t+1}")
    a(f"v_mul_f32 v{t+2}, 0.15915494, v{t+2}")
    a(f"v_fract_f32 v{t+3}, v{t+2}")
    a(f"v_cos_f32 v{vAr}, v{t+3}")
    a(f"v_sin_f32 v{vAi}, v{t+3}")
    a("s_nop 0")
    a(f"v_mul_f32 v{vAr}, v{vAr}, v{t+1}")
    a(f"v_mul_f32 v{vAi}, v{vAi}, v{t+1}")


def cmul(a, dr, di, ar, ai, br, bi, t):
    a(f"v_mul_f32 v{t}, v{ai}, v{bi}")
    a(f"v_mul_f32 v{di}, v{ar}, v{bi}")
    a(f"v_fma_f32 v{dr}, v{ar}, v{br}, -v{t}")
    a(f"v_fma_f32 v{di}, v{ai}, v{br}, v{di}")


def gen_k2(a):
    name = "k2_kernel"
    kernel_header(a, name)
    a("s_cmp_ge_u32 s2, 256")
    a("s_cbranch_scc1 k2_end")
    a("s_load_dwordx2 s[24:25], s[0:1], 80")
    a("s_load_dwordx2 s[26:27], s[0:1], 88")
    a("s_load_dwordx2 s[28:29], s[0:1], 128")
    a("s_load_dwordx4 s[48:51], s[0:1], 8")
    a("s_load_dwordx2 s[52:53], s[0:1], 56")
    a("s_and_b32 s30, s2, 7")
    a("s_lshr_b32 s31, s2, 3")
    a("s_lshr_b32 s32, s31, 3")
    a("s_and_b32 s33, s31, 7")
    a("s_lshl_b32 s34, s32, 3")
    a("s_add_u32 s34, s34, s30")
    emit_lane_ids(a)
    a("s_waitcnt lgkmcnt(0)")
    a.stamp(0)
    if "nopf" not in EXP:
        a("s_load_dwordx2 s[96:97], s[0:1], 96")
        a("v_lshrrev_b32 v2, 5, v0")
        a("v_and_b32 v3, 31, v0")
        a("v_lshlrev_b32 v3, 4, v3")
        a("s_mul_i32 s43, s31, 56")
        a("v_add_u32 v2, s43, v2")
        a("v_lshlrev_b32 v2, 12, v2")
        a("v_add_u32 v2, v2, v3")
        a("s_lshl_b32 s43, s30, 9")
        a("v_add_u32 v2, s43, v2")
        a("s_waitcnt lgkmcnt(0)")
        a.srd(96, 96, 0, 1792 * 2048 * 2)
        for q in range(7):
            a(f"s_mov_b32 s43, {q*8*4096}")
            a(f"buffer_load_dwordx4 v[{224+4*(q&3)}:{227+4*(q&3)}], v2, s[96:99], s43 offen")
            a.vm_issue("pf")
    a("s_cmp_ge_u32 s30, 4")
    a("s_cbranch_scc0 k2_gemm")
    a("s_cmp_ge_u32 s31, 24")
    a("s_cbranch_scc1 k2_end" if "nofix" in EXP else "s_cbranch_scc1 k2_fixup")
    a.label("k2_gemm")
    a.srd(4, 28, WS_H2, SZ_H2)
    a.srd(8, 24, 0, 2048 * 1792 * 2)
    a.srd(12, 28, WS_GU, SZ_GU)
    a.srd(16, 26, 0, 1792 * 2)
    VA0, VA1, VB0, VB1 = 10, 11, 12, 13
    RA_LO, RA_HI, RB_LO, RB_HI = 14, 15, 16, 17
    ACC = 32
    FR = 64
    a("s_lshl_b32 s45, s33, 7")
    a("s_lshl_b32 s46, s34, 7")
    emit_dma_voffsets(a, VA0, VA1, 1024, 45, 'tr')
    emit_dma_voffsets(a, VB0, VB1, 3584, 46, 'tr')
    emit_tr_read_addr(a, RA_LO, RA_HI, 41)
    emit_tr_read_addr(a, RB_LO, RB_HI, 42)
    a("s_lshl_b32 s44, s40, 11")
    a("v_and_b32 v2, 31, v1")
    a("s_lshl_b32 s43, s42, 5")
    a("v_add_u32 v2, s43, v2")
    a("s_lshl_b32 s43, s34, 6")
    a("v_add_u32 v21, s43, v2")
    a("v_lshlrev_b32 v2, 1, v21")
    a("buffer_load_ushort v20, v2, s[16:19], 0 offen")
    a.vm_issue("bias")
    for r in range(16):
        a(f"v_mov_b32 v{ACC+r}, 0")
    D, T = 8, 32
    SA, SB = 20, 21

    def dma(t):
        slot = t % D
        a(f"s_mov_b32 s{SA}, {65536*t}")
        a(f"s_mov_b32 s{SB}, {229376*t}")
        emit_dma_tile(a, ("t", t), VA0, VA1, 4, SA, slot * 16384)
        emit_dma_tile(a, ("t", t), VB0, VB1, 8, SB, slot * 16384 + 8192)

    def reads(t):
        slot = t % D
        buf = t & 1
        hi = slot >= 4
        base = (slot - 4 if hi else slot) * 16384
        for kk in range(4):
            for h in range(2):
                fa = FR + 32 * buf + 4 * kk + 2 * h
                fb = FR + 32 * buf + 16 + 4 * kk + 2 * h
                a(f"ds_read_b64_tr_b16 v[{fa}:{fa+1}], v{RA_HI if hi else RA_LO} offset:{base + kk*2048 + h*512}")
                a(f"ds_read_b64_tr_b16 v[{fb}:{fb+1}], v{RB_HI if hi else RB_LO} offset:{base + 8192 + kk*2048 + h*512}")

    def mfmas(t):
        buf = t & 1
        for kk in range(4):
            fa = FR + 32 * buf + 4 * kk
            fb = FR + 32 * buf + 16 + 4 * kk
            a(f"v_mfma_f32_32x32x16_bf16 v[{ACC}:{ACC+15}], v[{fa}:{fa+3}], v[{fb}:{fb+3}], v[{ACC}:{ACC+15}]")

    for t in range(D):
        dma(t)
    a.vm_wait(("t", 0))
    a.stamp(1)
    a("s_barrier")
    reads(0)
    for t in range(T):
        if t in (8, 16, 24):
            a.stamp(2 + t // 8 - 1)
        if t + 1 < T:
            a.vm_wait(("t", t + 1))
        a("s_waitcnt lgkmcnt(0)")
        a("s_barrier")
        if t + D < T:
            dma(t + D)
        if t + 1 < T and "noread" not in EXP:
            reads(t + 1)
        if "nomfma" not in EXP:
            mfmas(t)
    a.stamp(5)
    a.vm_wait_all()
    a("v_lshlrev_b32 v20, 16, v20")
    a("v_lshrrev_b32 v2, 5, v1")
    a("v_lshlrev_b32 v2, 2, v2")
    a("s_lshl_b32 s43, s41, 5")
    a("v_add_u32 v2, s43, v2")
    a("s_lshl_b32 s43, s33, 6")
    a("v_add_u32 v2, s43, v2")
    a("s_mov_b32 s43, 3584")
    a("v_mul_lo_u32 v2, v2, s43")
    a("v_lshlrev_b32 v3, 1, v21")
    a("v_add_u32 v22, v2, v3")
    a.nop(12)
    C0 = 0.7978845608028654
    a(f"s_mov_b32 s47, {f2u(C0*0.044715)}")
    a(f"s_mov_b32 s54, {f2u(C0)}")
    a(f"s_mov_b32 s55, {f2u(-2.0*LOG2E)}")
    for r in range(16):
        u, t1, t2 = 4, 5, 6
        emit_round_bf16(a, u, ACC + r)
        a(f"v_add_f32 v{u}, v{u}, v20")
        emit_round_bf16(a, u, u)
        a(f"v_mul_f32 v{t1}, v{u}, v{u}")
        a(f"v_mov_b32 v{t2}, s54")
        a(f"v_fma_f32 v{t1}, v{t1}, s47, v{t2}")
        a(f"v_mul_f32 v{t1}, v{t1}, v{u}")
        a(f"v_mul_f32 v{t1}, s55, v{t1}")
        a(f"v_exp_f32 v{t1}, v{t1}")
        a("s_nop 0")
        a(f"v_add_f32 v{t1}, 1.0, v{t1}")
        a(f"v_rcp_f32 v{t1}, v{t1}")
        a("s_nop 0")
        a(f"v_mul_f32 v{t1}, v{t1}, v{u}")
        a(f"v_cvt_pk_bf16_f32 v{t1}, v{t1}, v{t1}")
        rowoff = (8 * (r >> 2) + (r & 3)) * 3584
        if rowoff:
            a(f"v_add_u32 v{t2}, {rowoff}, v22")
            a(f"buffer_store_short v{t1}, v{t2}, s[12:15], 0 offen")
        else:
            a(f"buffer_store_short v{t1}, v22, s[12:15], 0 offen")
    a.stamp(6)
    a.stamp_store(7, 28)
    a("s_branch k2_end")

    a.label("k2_fixup")
    a("s_sub_u32 s56, s30, 4")
    a("s_lshl_b32 s56, s56, 3")
    a("s_add_u32 s56, s56, s31")
    a("s_sub_u32 s56, s56, 24")
    a.srd(4, 28, WS_HLOC, SZ_HLOC)
    a.srd(8, 28, WS_E, SZ_E)
    a.srd(12, 28, WS_HFIN, SZ_HFIN)
    a.srd(16, 48, 0, 1024)
    a.srd(60, 50, 0, 1024)
    a.srd(64, 52, 0, 1024)
    a("v_lshlrev_b32 v2, 2, v0")
    a("buffer_load_dword v3, v2, s[16:19], 0 offen")
    a("buffer_load_dword v4, v2, s[60:63], 0 offen")
    a("buffer_load_dword v5, v2, s[64:67], 0 offen")
    a("v_lshlrev_b32 v6, 3, v0")
    EB = 128
    for j in range(31):
        a(f"s_mov_b32 s43, {j*4096}")
        a(f"buffer_load_dwordx2 v[{EB+4*j}:{EB+4*j+1}], v6, s[8:11], s43 offen")
        a(f"buffer_load_dwordx2 v[{EB+4*j+2}:{EB+4*j+3}], v6, s[8:11], s43 offen offset:2048")
    a("s_waitcnt vmcnt(62)")
    LR0, LR1, LI0, LI1, LD0, LD1 = 8, 9, 10, 11, 12, 13
    for (src, d0, d1) in ((3, LR0, LR1), (4, LI0, LI1), (5, LD0, LD1)):
        a(f"v_lshlrev_b32 v{d0}, 16, v{src}")
        a(f"v_and_b32 v{d1}, 0xffff0000, v{src}")
    AR0, AI0, AR1, AI1 = 14, 15, 16, 17
    emit_lambar(a, LR0, LI0, LD0, AR0, AI0, 20)
    emit_lambar(a, LR1, LI1, LD1, AR1, AI1, 20)
    PR0, PI0, PR1, PI1 = 24, 25, 26, 27
    for (ar, ai, pr, pi) in ((AR0, AI0, PR0, PI0), (AR1, AI1, PR1, PI1)):
        a(f"v_mov_b32 v{pr}, v{ar}")
        a(f"v_mov_b32 v{pi}, v{ai}")
        for _ in range(6):
            a(f"v_mul_f32 v20, v{pi}, v{pi}")
            a(f"v_mul_f32 v21, v{pr}, v{pi}")
            a(f"v_fma_f32 v{pr}, v{pr}, v{pr}, -v20")
            a(f"v_add_f32 v{pi}, v21, v21")
    CR0, CI0, CR1, CI1 = 28, 29, 30, 31
    for r in (CR0, CI0, CR1, CI1):
        a(f"v_mov_b32 v{r}, 0")
    a("s_waitcnt vmcnt(0)")
    for j in range(31):
        a(f"s_cmp_le_u32 s56, {j}")
        a("s_cbranch_scc1 k2_carry_done")
        e = EB + 4 * j
        for (pr, pi, cr, ci, er, ei) in ((PR0, PI0, CR0, CI0, e, e + 2), (PR1, PI1, CR1, CI1, e + 1, e + 3)):
            a(f"v_fma_f32 v20, v{pr}, v{cr}, v{er}")
            a(f"v_fma_f32 v21, v{pr}, v{ci}, v{ei}")
            a(f"v_fma_f32 v20, -v{pi}, v{ci}, v20")
            a(f"v_fma_f32 v21, v{pi}, v{cr}, v21")
            a(f"v_mov_b32 v{cr}, v20")
            a(f"v_mov_b32 v{ci}, v21")
    a.label("k2_carry_done")
    a("s_lshl_b32 s57, s56, 18")
    a("v_lshlrev_b32 v6, 3, v0")
    a("v_mov_b32 v7, s57")
    a("v_add_u32 v6, v7, v6")
    a("s_lshl_b32 s57, s56, 17")
    a("v_lshlrev_b32 v7, 2, v0")
    a("v_mov_b32 v2, s57")
    a("v_add_u32 v7, v2, v7")
    HB = 64
    a.vmq = []
    for batch in range(4):
        for t in range(16):
            row = batch * 16 + t
            a(f"s_mov_b32 s43, {row*4096}")
            a(f"buffer_load_dwordx2 v[{HB+4*t}:{HB+4*t+1}], v6, s[4:7], s43 offen")
            a.vm_issue(("h", row))
            a(f"buffer_load_dwordx2 v[{HB+4*t+2}:{HB+4*t+3}], v6, s[4:7], s43 offen offset:2048")
            a.vm_issue(("h", row))
        for t in range(16):
            row = batch * 16 + t
            a.vm_wait(("h", row))
            h = HB + 4 * t
            for (ar, ai, cr, ci) in ((AR0, AI0, CR0, CI0), (AR1, AI1, CR1, CI1)):
                a(f"v_mul_f32 v20, v{ai}, v{ci}")
                a(f"v_mul_f32 v21, v{ai}, v{cr}")
                a(f"v_fma_f32 v{cr}, v{ar}, v{cr}, -v20")
                a(f"v_fma_f32 v{ci}, v{ar}, v{ci}, v21")
            a(f"v_add_f32 v{h}, v{h}, v{CR0}")
            a(f"v_add_f32 v{h+1}, v{h+1}, v{CR1}")
            a(f"v_add_f32 v{h+2}, v{h+2}, v{CI0}")
            a(f"v_add_f32 v{h+3}, v{h+3}, v{CI1}")
            o = 32 + 2 * (t & 7)
            a(f"v_cvt_pk_bf16_f32 v{o}, v{h}, v{h+1}")
            a(f"v_cvt_pk_bf16_f32 v{o+1}, -v{h+2}, -v{h+3}")
            a(f"s_mov_b32 s43, {row*2048}")
            a(f"buffer_store_dword v{o}, v7, s[12:15], s43 offen")
            a.vm_issue("st")
            a(f"buffer_store_dword v{o+1}, v7, s[12:15], s43 offen offset:1024")
            a.vm_issue("st")
    a.label("k2_end")
    a("s_endpgm")
    kernel_footer(a, name, 256)


def main():
    a = Asm()
    hdr = open(OUT + ".ref").read().split("\n")
    for line in hdr:
        if line.startswith("; @launch"):
            break
        a.raw(line)
    which = sys.argv[1] if len(sys.argv) > 1 else "123"
    if "1" in which:
        a.raw("; @launch kernel=k1_kernel grid=(256,1,1) block=(256,1,1) lds=131072")
    if "2" in which:
        a.raw("; @launch kernel=k2_kernel grid=(256,1,1) block=(256,1,1) lds=131072")
    if "3" in which:
        a.raw("; @launch kernel=k3_kernel grid=(256,1,1) block=(256,1,1) lds=131072")
    a.raw(".amdgcn_target \"amdgcn-amd-amdhsa--gfx950\"")
    a.raw(".text")
    if "1" in which:
        import gen_k1
        gen_k1.gen_k1(a)
    if "2" in which:
        gen_k2(a)
    if "3" in which:
        import gen_k3
        gen_k3.gen_k3(a)
    open(OUT, "w").write("\n".join(a.lines) + "\n")


if __name__ == "__main__":
    main()
```
